```python
import torch

def _softmax(x, axis=-1):
    return torch.softmax(x, dim=axis)

def _gelu(x):
    return torch.nn.functional.gelu(x, approximate='tanh')

def _silu(x):
    return torch.nn.functional.silu(x)

def _sigmoid(x):
    return torch.sigmoid(x)

def _layernorm(x, axis=-1, eps=1e-05):
    m = x.mean(dim=axis, keepdim=True)
    v = x.var(dim=axis, keepdim=True, unbiased=False)
    return (x - m) / torch.sqrt(v + eps)

def _scatter_add(tgt, idx, src, axis=0):
    return tgt.clone().index_add_(axis, idx, src)

def _segment_sum(src, seg, n):
    out = torch.zeros((n,) + src.shape[1:], dtype=src.dtype)
    return out.index_add_(0, seg, src)

def _pad(x, pw):
    flat = tuple((v for pair in reversed(pw) for v in pair))
    return torch.nn.functional.pad(x, flat)
kernel_name = 'adaLN_cond__softmax_full_mha__glu_gated_geglu__prompt'

def setup_inputs():

    _w = lambda a: (lambda t: t.to(torch.bfloat16) if t.is_floating_point() else t)(torch.as_tensor(a))

    def _A_setup():
        B, S, D = (1, 2048, 576)
        return {'x': _w((lambda *s: torch.randn(*s, dtype=torch.bfloat16) * 0.05)(B, S, D)), 'wqkv': _w((lambda *s: torch.randn(*s, dtype=torch.bfloat16) * 0.05)(D, 3 * D)), 'wo': _w((lambda *s: torch.randn(*s, dtype=torch.bfloat16) * 0.05)(D, D))}
    _A_in = _A_setup()

    def _B_setup():
        B, S, Dm, Df = (1, 2048, 576, 4608)
        return {'x': _w((lambda *s: torch.randn(*s, dtype=torch.bfloat16) * 0.05)(B, S, Dm)), 'w_gate': _w((lambda *s: torch.randn(*s, dtype=torch.bfloat16) * 0.8)(Dm, Df) * Dm ** (-0.5)), 'w_up': _w((lambda *s: torch.randn(*s, dtype=torch.bfloat16) * 0.8)(Dm, Df) * Dm ** (-0.5)), 'w_down': _w((lambda *s: torch.randn(*s, dtype=torch.bfloat16) * 0.8)(Df, Dm) * Df ** (-0.5))}
    _B_in = _B_setup()
    return {'A_x': _A_in['x'], 'A_wqkv': _A_in['wqkv'], 'A_wo': _A_in['wo'], 'B_x': _B_in['x'], 'B_w_gate': _B_in['w_gate'], 'B_w_up': _B_in['w_up'], 'B_w_down': _B_in['w_down'], 'c': _w((lambda *s: torch.randn(*s, dtype=torch.bfloat16) * 0.1)(1, 576) * 8.0), 'w_mod': _w((lambda *s: torch.randn(*s, dtype=torch.bfloat16) * 0.1)(576, 6 * 576) * 576 ** (-0.5) * 8.0)}

def reference(A_x, A_wqkv, A_wo, B_x, B_w_gate, B_w_up, B_w_down, c, w_mod):

    def _A_ref(x, wqkv, wo):
        B, S, D = x.shape
        H = 32
        Dh = D // H
        qkv = (lambda x, *d: x.permute(*d))((x @ wqkv).reshape(B, S, 3, H, Dh), 2, 0, 3, 1, 4)
        q, k, v = (qkv[0], qkv[1], qkv[2])
        scale = Dh ** (-0.5)
        scores = torch.einsum('bhqd,bhkd->bhqk', q, k) * scale
        p = _softmax(scores, axis=-1)
        o = torch.einsum('bhqk,bhkd->bhqd', p, v)
        return (lambda x, *d: x.permute(*d))(o, 0, 2, 1, 3).reshape(B, S, D) @ wo

    def _B_ref(x, w_gate, w_up, w_down):
        g = torch.einsum('bsd,df->bsf', x, w_gate)
        u = torch.einsum('bsd,df->bsf', x, w_up)
        h = _gelu(g) * u
        return torch.einsum('bsf,fd->bsd', h, w_down)
    x = A_x
    mod = (_silu(c) @ w_mod).reshape(c.shape[0], 6, 1, -1)
    sa, ca, ga, sb, cb, gb = (mod[:, 0].clone(), mod[:, 1].clone(), mod[:, 2].clone(), mod[:, 3].clone(), mod[:, 4].clone(), mod[:, 5].clone())
    h = _layernorm(x, axis=-1) * (1 + ca) + sa
    x = x + ga * _A_ref(h, A_wqkv, A_wo)
    h = _layernorm(x, axis=-1) * (1 + cb) + sb
    x = x + gb * _B_ref(h, B_w_gate, B_w_up, B_w_down)
    return x
```

```python
import re

REG_RE = re.compile(r'^(-|abs\()?([vas])(\d+)\)?$')
RNG_RE = re.compile(r'^(-)?([vas])\[(\d+):(\d+)\]$')

def regs_of(op):
    op = op.strip()
    m = RNG_RE.match(op)
    if m: return [(m.group(2), i) for i in range(int(m.group(3)), int(m.group(4)) + 1)]
    m = REG_RE.match(op)
    if m: return [(m.group(2), int(m.group(3)))]
    if op == 'vcc': return [('s', 'vcc')]
    if op == 'exec': return [('s', 'exec')]
    if op == 'm0': return [('s', 'm0')]
    return []

TRANS = ('v_exp_f32', 'v_log_f32', 'v_rcp_f32', 'v_rsq_f32', 'v_sqrt_f32', 'v_sin_f32', 'v_cos_f32')
def mfma_passes(mn):
    if '32x32x4_2b' in mn: return 16
    if '32x32' in mn: return 8
    if '16x16' in mn: return 4
    raise ValueError(mn)

class Ins:
    def __init__(self, text):
        self.text = text
        t = text.split(';')[0].strip()
        parts = t.split(None, 1)
        self.mn = parts[0]
        rest = parts[1] if len(parts) > 1 else ''
        ops, depth, cur = [], 0, ''
        for ch in rest:
            if ch == '[': depth += 1
            if ch == ']': depth -= 1
            if ch == ',' and depth == 0: ops.append(cur.strip()); cur = ''
            else: cur += ch
        if cur.strip(): ops.append(cur.strip())
        self.mods = ''
        if ops:
            last = ops[-1].split(None, 1)
            ops[-1] = last[0]
            if len(last) > 1: self.mods = last[1]
        self.ops = ops
        mn = self.mn
        self.is_mfma = mn.startswith('v_mfma')
        self.is_valu = mn.startswith('v_') and not self.is_mfma
        self.is_trans = any(mn.startswith(x) for x in TRANS)
        self.is_ds = mn.startswith('ds_')
        self.is_vmem = mn.startswith('buffer_') or mn.startswith('global_')
        self.is_salu = mn.startswith('s_')
        self.is_dpp = 'dpp' in mn or 'row_' in self.mods or 'quad_perm' in self.mods
        self.is_perml = mn.startswith('v_permlane')
        R = [regs_of(o) for o in ops]
        rd, wr = [], []
        if self.is_mfma:
            wr = R[0]; self.srcA, self.srcB, self.srcC = R[1], R[2], R[3]; rd = R[1] + R[2] + R[3]
        elif self.is_valu:
            if mn.startswith('v_cmp'):
                wr = R[0]; rd = sum(R[1:], [])
                if mn.startswith('v_cmpx'): wr = wr + [('s', 'exec')]
            elif self.is_perml:
                wr = R[0] + R[1]; rd = R[0] + R[1]
            elif mn.startswith('v_add_co') or mn.startswith('v_sub_co') or mn.startswith('v_addc_co'):
                wr = R[0] + R[1]; rd = sum(R[2:], [])
            elif mn == 'v_nop':
                pass
            else:
                wr = R[0]; rd = sum(R[1:], [])
                if mn.startswith('v_fmac') or mn.startswith('v_dot2c') or 'UNUSED_PRESERVE' in self.mods or self.is_dpp or mn.startswith('v_writelane'):
                    rd = rd + R[0]
                if mn.startswith('v_cndmask') and len(ops) == 3: rd = rd + [('s', 'vcc')]
        elif self.is_ds:
            if mn.startswith('ds_read') or mn.startswith('ds_bpermute') or mn.startswith('ds_swizzle') or '_rtn' in mn:
                wr = R[0]; rd = sum(R[1:], [])
            else:
                rd = sum(R, [])
        elif self.is_vmem:
            lds = bool(re.search(r'\blds\b', self.mods)) or '_lds_' in mn
            self.lds = lds
            if ('load' in mn) and not lds:
                wr = R[0]; rd = sum(R[1:], [])
            elif 'atomic' in mn and 'sc0' in self.mods:
                wr = R[0]; rd = sum(R, [])
            else:
                rd = sum(R, [])
                if lds: rd = rd + [('s', 'm0')]
        elif self.is_salu:
            if mn.startswith('s_cmp') or mn.startswith('s_cbranch') or mn in ('s_branch', 's_waitcnt', 's_barrier', 's_nop', 's_endpgm', 's_setprio', 's_sleep') or mn.startswith('s_bitcmp'):
                rd = sum(R, [])
            else:
                wr = R[0] if R else []; rd = sum(R[1:], [])
                if 'saveexec' in mn: wr = wr + [('s', 'exec')]
        self.rd, self.wr = set(rd), set(wr)
        self.states = 1
        if mn == 's_nop': self.states = int(ops[0], 0) + 1

def need_states(p, c):
    n = 0
    pv = {r for r in p.wr if r[0] in 'va'}
    ps = {r for r in p.wr if r[0] == 's'}
    if p.is_valu:
        if c.is_mfma and (pv & c.rd): n = max(n, 2)
        if c.is_perml and (pv & c.rd): n = max(n, 2)
        if c.is_valu and c.is_dpp and (pv & c.rd): n = max(n, 2)
        if c.mn.startswith('v_readfirstlane') or c.mn.startswith('v_readlane'):
            if pv & c.rd: n = max(n, 1)
        if p.is_trans and c.is_valu and not c.is_trans and (pv & c.rd): n = max(n, 1)
        if p.is_trans and (c.is_vmem or c.is_ds) and (pv & c.rd): n = max(n, 1)
        if ('sdwa' in p.mn or 'op_sel' in p.mods and not p.mn.startswith('v_pk')) and c.is_valu and (pv & (c.rd | c.wr)): n = max(n, 1)
        if p.mn.startswith('v_dot2') and (pv & (c.rd | c.wr)):
            if not (c.mn == p.mn and c.is_valu and pv & set(regs_of(c.ops[-1] if not c.mn.startswith('v_dot2c') else c.ops[0])) and not (pv & set(regs_of(c.ops[1]) + regs_of(c.ops[2])))):
                n = max(n, 3)
        if ps:
            if c.is_vmem and (ps & c.rd): n = max(n, 5)
            if c.is_valu and (ps & c.rd): n = max(n, 2)
            if (c.mn.startswith('v_readlane') or c.mn.startswith('v_writelane')) and (ps & c.rd): n = max(n, 4)
            if ('s', 'exec') in ps:
                if c.is_mfma: n = max(n, 4)
                if c.is_dpp: n = max(n, 5)
                if c.is_perml or c.mn.startswith('v_read') : n = max(n, 4)
            if c.is_salu and (ps & c.rd): n = max(n, 1)
    if p.is_salu and ('s', 'm0') in p.wr and c.is_vmem and ('s', 'm0') in c.rd: n = max(n, 1)
    if p.is_mfma:
        ps_ = mfma_passes(p.mn)
        D = p.wr
        if c.is_mfma:
            if D & set(c.srcA + c.srcB): n = max(n, {4: 8, 8: 12, 16: 20}[ps_])
            if D & set(c.srcC):
                same = (set(c.srcC) == D and mfma_passes(c.mn) == ps_)
                if not same: n = max(n, {4: 6, 8: 10, 16: 18}[ps_])
            elif D & c.wr:
                n = max(n, {4: 6, 8: 10, 16: 18}[ps_])
        elif (c.is_valu or c.is_vmem or c.is_ds) and (D & (c.rd | c.wr)):
            n = max(n, {4: 8, 8: 12, 16: 20}[ps_])
        if c.is_valu and (set(p.srcC) & c.wr): n = max(n, {4: 3, 8: 7, 16: 15}[ps_])
        if (c.is_ds or c.is_vmem) and (set(p.srcC) & c.wr): n = max(n, {4: 3, 8: 7, 16: 15}[ps_])
    if p.is_vmem and 'store' in p.mn and ('x4' in p.mn or 'x3' in p.mn):
        data = set(regs_of(p.ops[0])) if p.mn.startswith('buffer') else set(regs_of(p.ops[1]))
        if data & c.wr: n = max(n, 2 if c.is_valu else 1)
    return n

class Prog:
    def __init__(self):
        self.items = []
        self.vm = []
        self.lg = []
    def __call__(self, text):
        for ln in text.split('\n'):
            ln = ln.strip()
            if not ln or ln.startswith(';'): continue
            if ln.endswith(':'): self.items.append(('l', ln[:-1]))
            elif ln.startswith('.'): self.items.append(('r', ln))
            else: self.items.append(('i', Ins(ln)))
    def label(self, l): self.items.append(('l', l))
    def vmem(self, text, tag=None):
        self(text); self.vm.append(tag)
    def lds(self, text, tag=None):
        self(text); self.lg.append(tag)
    def _n(self, q, tags):
        if not isinstance(tags, (list, tuple, set)): tags = [tags]
        last = -1
        for i, t in enumerate(q):
            if t in tags: last = i
        return last
    def wait(self, vm=None, lg=None, force=False):
        s = []
        if vm is not None:
            last = len(self.vm) - 1 if vm == 'all' else self._n(self.vm, vm)
            if last >= 0:
                n = len(self.vm) - 1 - last
                assert n <= 63, "vmcnt overflow %d" % n
                s.append(f"vmcnt({n})"); self.vm = self.vm[last + 1:]
            elif force: s.append(f"vmcnt({min(63, len(self.vm))})")
        if lg is not None:
            last = len(self.lg) - 1 if lg == 'all' else self._n(self.lg, lg)
            if last >= 0:
                n = len(self.lg) - 1 - last
                assert n <= 15, "lgkmcnt overflow %d" % n
                s.append(f"lgkmcnt({n})"); self.lg = self.lg[last + 1:]
            elif force: s.append(f"lgkmcnt({min(15, len(self.lg))})")
        if s: self("s_waitcnt " + " ".join(s))
    def finalize(self, backedges=True):
        out = []
        hist = []
        W = 24
        npad = 0
        def required(c, hist):
            need = 0; dist = 0
            for p in reversed(hist):
                k = need_states(p, c)
                if k - dist > need: need = k - dist
                dist += p.states
                if dist >= W: break
            return need
        label_pos = {}
        flat = []
        for kind, x in self.items:
            if kind == 'i':
                n = required(x, hist)
                while n > 0:
                    k = min(n, 16)
                    nop = Ins(f"s_nop {k-1}")
                    out.append(('i', nop)); hist.append(nop); flat.append(nop); n -= k; npad += 1
                out.append(('i', x)); hist.append(x); flat.append(x)
                hist = hist[-W:]
                if x.mn in ('s_endpgm', 's_branch'): hist = []
            else:
                if kind == 'l': label_pos[x] = len(flat)
                out.append((kind, x))
        errs = []
        idx = 0
        for i, x in enumerate(flat):
            if x.mn.startswith('s_cbranch') or x.mn == 's_branch':
                tgt = x.ops[0]
                if tgt in label_pos:
                    h = flat[max(0, i - W):i + 1]
                    for c in flat[label_pos[tgt]:label_pos[tgt] + W]:
                        n = required(c, h)
                        if n > 0: errs.append(f"branch-edge hazard -> {tgt}: {c.text} needs {n}")
                        h = h + [c]
                        if c.mn in ('s_endpgm', 's_branch'): break
        if errs: raise RuntimeError("\n".join(errs))
        self.npad = npad
        txt = []
        for kind, x in out:
            if kind == 'i': txt.append("    " + x.text)
            elif kind == 'l': txt.append(x + ":")
            else: txt.append(x)
        return "\n".join(txt)

def vr(a, n=1, f='v'):
    return f"{f}{a}" if n == 1 else f"{f}[{a}:{a+n-1}]"
def sr(a, n=1): return vr(a, n, 's')
def ar(a, n=1): return vr(a, n, 'a')

def srd(p, d, base_lo, base_hi, off, size):
    if off:
        p(f"s_add_u32 s{d}, s{base_lo}, {hex(off)}")
        p(f"s_addc_u32 s{d+1}, s{base_hi}, 0")
    else:
        p(f"s_mov_b32 s{d}, s{base_lo}")
        p(f"s_mov_b32 s{d+1}, s{base_hi}")
    p(f"s_mov_b32 s{d+2}, {hex(size)}")
    p(f"s_mov_b32 s{d+3}, 0x20000")

def kernel_text(name, body, vgpr, agpr=0, sgpr=96):
    acc = (vgpr + 3) // 4 * 4
    nfv = acc + agpr if agpr else vgpr
    head = f""".text
.globl {name}
.p2align 8
.type {name},@function
{name}:
{body}
"""
    desc = f""".section .rodata,"a"
.p2align 6
.amdhsa_kernel {name}
  .amdhsa_next_free_vgpr {nfv}
  .amdhsa_next_free_sgpr {sgpr}
  .amdhsa_accum_offset {acc}
  .amdhsa_group_segment_fixed_size 0
  .amdhsa_kernarg_size 96
  .amdhsa_user_sgpr_count 2
  .amdhsa_user_sgpr_kernarg_segment_ptr 1
  .amdhsa_system_sgpr_workgroup_id_x 1
  .amdhsa_float_denorm_mode_32 3
.end_amdhsa_kernel
"""
    return head, desc

import struct
def f2h(x): return hex(struct.unpack('<I', struct.pack('<f', x))[0])

def merge_loop(p, i0, i1):
    A = p.items[i0:i1]; B = p.items[i1:]
    assert len(A) == len(B), (len(A), len(B))
    for k, (x, y) in enumerate(zip(A, B)):
        if x[0] != 'i':
            assert x == y; continue
        if x[1].text == y[1].text: continue
        assert x[1].mn == 's_waitcnt' and y[1].mn == 's_waitcnt', (x[1].text, y[1].text)
        fx = dict(re.findall(r'(\w+)\((\d+)\)', x[1].text)); fy = dict(re.findall(r'(\w+)\((\d+)\)', y[1].text))
        assert fx.keys() == fy.keys(), (x[1].text, y[1].text)
        p.items[i0+k] = ('i', Ins("s_waitcnt " + " ".join(f"{c}({min(int(fx[c]), int(fy[c]))})" for c in fx)))
    del p.items[i1:]
```

```python
from asmlib import *
from layout import *

def prologue(p):
    p("s_load_dwordx16 s[4:19], s[0:1], 0")
    p("s_load_dwordx8 s[20:27], s[0:1], 64")

def wave_id(p, s, v=0, tmp=1):
    p(f"v_lshrrev_b32 v{tmp}, 6, v{v}")
    p(f"v_readfirstlane_b32 s{s}, v{tmp}")

LOG2E = 0x3fb8aa3b

def gemv_job(p, s_g, uid):
    srd(p, 32, S_WMOD, S_WMOD+1, 0, 576*3456*2)
    srd(p, 36, S_C, S_C+1, 0, 1152)
    srd(p, 40, S_WS, S_WS+1, MOD, MOD_SZ)
    p("v_lshrrev_b32 v2, 2, v0")
    p("v_and_b32 v3, 3, v0")
    p("v_lshlrev_b32 v4, 1, v2")
    for i in range(9):
        p.vmem(f"buffer_load_ushort v{10+i}, v4, s[36:39], 0 offen offset:{128*i}", 'c')
    p("s_movk_i32 s44, 6912")
    p("v_mul_lo_u32 v5, v2, s44")
    p("v_lshl_add_u32 v5, v3, 4, v5")
    p(f"s_lshl_b32 s45, s{s_g}, 6")
    for i in range(9):
        p.vmem(f"buffer_load_dwordx4 v[{20+4*i}:{23+4*i}], v5, s[32:35], s45 offen", f'w{i}')
        if i < 8: p(f"s_add_u32 s45, s45, {64*6912}")
    p.wait(vm='c')
    p(f"s_mov_b32 s46, {hex(LOG2E)}")
    for i in range(9): p(f"v_lshlrev_b32 v{10+i}, 16, v{10+i}")
    for i in range(9): p(f"v_mul_f32 v{60+i}, s46, v{10+i}")
    for i in range(9): p(f"v_exp_f32 v{60+i}, -v{60+i}")
    for i in range(9): p(f"v_add_f32 v{60+i}, 1.0, v{60+i}")
    for i in range(9): p(f"v_rcp_f32 v{60+i}, v{60+i}")
    for i in range(9): p(f"v_mul_f32 v{10+i}, v{10+i}, v{60+i}")
    for i in range(9): p(f"v_cvt_pk_bf16_f32 v{10+i}, v{10+i}, v{10+i}")
    for i in range(9): p(f"v_and_b32 v{10+i}, 0xffff0000, v{10+i}")
    for i in range(9):
        p.wait(vm=f'w{i}')
        for d in range(4):
            p(f"v_lshlrev_b32 v{60+2*d}, 16, v{20+4*i+d}")
            p(f"v_and_b32 v{61+2*d}, 0xffff0000, v{20+4*i+d}")
        for e in range(8):
            if i == 0: p(f"v_mul_f32 v{70+e}, v{60+e}, v10")
            else: p(f"v_fmac_f32 v{70+e}, v{60+e}, v{10+i}")
    for e in range(8): p(f"v_add_f32_dpp v{70+e}, v{70+e}, v{70+e} row_shr:4 row_mask:0xf bank_mask:0xf bound_ctrl:1")
    for e in range(8): p(f"v_add_f32_dpp v{70+e}, v{70+e}, v{70+e} row_shr:8 row_mask:0xf bank_mask:0xf bound_ctrl:1")
    p("v_lshrrev_b32 v6, 4, v0")
    p("v_lshlrev_b32 v6, 7, v6")
    p("v_lshl_add_u32 v6, v3, 5, v6")
    p("v_and_b32 v7, 15, v0")
    p("v_cmp_le_u32 vcc, 12, v7")
    p("s_and_saveexec_b64 s[48:49], vcc")
    p("ds_write_b128 v6, v[70:73]")
    p("ds_write_b128 v6, v[74:77] offset:16")
    p("s_mov_b64 exec, s[48:49]")
    p("s_waitcnt lgkmcnt(0)")
    p("s_barrier")
    p("v_cmp_gt_u32 vcc, 32, v0")
    p("s_and_saveexec_b64 s[48:49], vcc")
    p(f"s_cbranch_execz L_gemv_end{uid}")
    p("v_lshlrev_b32 v6, 2, v0")
    for i in range(16):
        p(f"ds_read_b32 v{20+i}, v6 offset:{128*i}")
        if i == 11: p("s_waitcnt lgkmcnt(4)")
    p("s_waitcnt lgkmcnt(0)")
    for i in range(8): p(f"v_add_f32 v{20+2*i}, v{20+2*i}, v{21+2*i}")
    for i in range(4): p(f"v_add_f32 v{20+4*i}, v{20+4*i}, v{22+4*i}")
    p("v_add_f32 v20, v20, v24\nv_add_f32 v28, v28, v32\nv_add_f32 v20, v20, v28")
    p("v_cvt_pk_bf16_f32 v20, v20, v20\nv_and_b32 v20, 0xffff0000, v20")
    p(f"s_sub_u32 s44, s{s_g}, 18\ns_cmp_lt_u32 s44, 18\ns_cselect_b32 s46, 1, 0")
    p(f"s_sub_u32 s44, s{s_g}, 72\ns_cmp_lt_u32 s44, 18\ns_cselect_b32 s46, 1, s46")
    p("s_cmp_eq_u32 s46, 0")
    p(f"s_cbranch_scc1 L_gemv_st{uid}")
    p("v_add_f32 v20, 1.0, v20\nv_cvt_pk_bf16_f32 v20, v20, v20\nv_and_b32 v20, 0xffff0000, v20")
    p.label(f"L_gemv_st{uid}")
    p(f"s_lshl_b32 s45, s{s_g}, 7")
    p("buffer_store_dword v20, v6, s[40:43], s45 offen")
    p.label(f"L_gemv_end{uid}")
    p("s_endpgm")
    p.vm = []; p.lg = []

def ln_job(p, s_t, s_w, with_xf=True):
    srd(p, 32, S_X, S_X+1, 0, T*D*2)
    srd(p, 36, S_WS, S_WS+1, XN, XT_SZ)
    srd(p, 40, S_WS, S_WS+1, XF, XT_SZ)
    p("v_and_b32 v1, 63, v0")
    p("v_lshrrev_b32 v2, 3, v0")
    p("v_and_b32 v3, 7, v0")
    p("v_mul_u32_u24 v4, 1152, v2")
    p("v_lshl_add_u32 v4, v3, 4, v4")
    p(f"s_mul_i32 s44, s{s_t}, {32*1152}")
    for i in range(9):
        p.vmem(f"buffer_load_dwordx4 v[{12+4*i}:{15+4*i}], v4, s[32:35], s44 offen offset:{128*i}", f'x{i}')
    p("v_mul_u32_u24 v5, 528, v3")
    p("v_lshl_add_u32 v5, v2, 4, v5")
    p("v_lshrrev_b32 v6, 5, v1")
    p("v_mul_u32_u24 v6, 528, v6")
    p("v_and_b32 v7, 31, v1")
    p("v_lshl_add_u32 v6, v7, 4, v6")
    p(f"s_mul_i32 s45, s{s_w}, {9*1056}")
    p("v_add_u32 v6, s45, v6")
    p("v_lshlrev_b32 v7, 4, v1")
    p(f"s_mul_i32 s46, s{s_t}, 36864")
    p(f"s_mul_i32 s47, s{s_w}, 9216")
    p("s_add_u32 s46, s46, s47")
    p("s_mov_b32 s48, 0x3f803f80\ns_mov_b32 s49, 0x00003f80\ns_mov_b32 s50, 0x3f800000")
    p("v_mov_b32 v8, 0\nv_mov_b32 v9, 0")
    for i in range(9):
        p.wait(vm=f'x{i}')
        for d in range(4):
            p(f"v_dot2_f32_bf16 v{8+(d&1)}, v{12+4*i+d}, s48, v{8+(d&1)}")
        if with_xf:
            p.lds(f"ds_write_b128 v5, v[{12+4*i}:{15+4*i}] offset:{8*528*i}")
    p("v_add_f32 v8, v8, v9")
    def red8(r):
        p(f"v_add_f32_dpp v{r}, v{r}, v{r} quad_perm:[1,0,3,2] row_mask:0xf bank_mask:0xf")
        p(f"v_add_f32_dpp v{r}, v{r}, v{r} quad_perm:[2,3,0,1] row_mask:0xf bank_mask:0xf")
        p(f"v_add_f32_dpp v{r}, v{r}, v{r} row_half_mirror row_mask:0xf bank_mask:0xf")
    red8(8)
    p(f"v_mul_f32 v8, {f2h(-1/576)}, v8")
    if with_xf:
        p.wait(lg='all'); p("s_barrier")
        for i in range(9): p.lds(f"ds_read_b128 v[{124+4*i}:{127+4*i}], v6 offset:{1056*i}", f'r{i}')
    for i in range(36):
        p(f"v_dot2_f32_bf16 v{48+2*i}, v{12+i}, s49, v8")
        p(f"v_dot2_f32_bf16 v{49+2*i}, v{12+i}, s50, v8")
    if with_xf:
        p("s_mov_b32 s47, s46")
        for i in range(9):
            p.wait(lg=f'r{i}')
            p.vmem(f"buffer_store_dwordx4 v[{124+4*i}:{127+4*i}], v7, s[40:43], s47 offen offset:{1024*(i%4)}")
            if i % 4 == 3: p("s_add_u32 s47, s47, 4096")
    p("v_mul_f32 v9, v48, v48\nv_mul_f32 v10, v49, v49")
    for i in range(2, 72): p(f"v_fmac_f32 v{9+(i&1)}, v{48+i}, v{48+i}")
    p("v_add_f32 v9, v9, v10")
    red8(9)
    p(f"v_mov_b32 v10, {f2h(1e-5)}")
    p(f"v_fmac_f32 v10, {f2h(1/576)}, v9")
    p("v_rsq_f32 v10, v10")
    for i in range(36): p(f"v_pk_mul_f32 v[{48+2*i}:{49+2*i}], v[{48+2*i}:{49+2*i}], v[10:11] op_sel_hi:[1,0]")
    for i in range(36): p(f"v_cvt_pk_bf16_f32 v{12+i}, v{48+2*i}, v{49+2*i}")
    if with_xf: p("s_barrier")
    for i in range(9): p.lds(f"ds_write_b128 v5, v[{12+4*i}:{15+4*i}] offset:{8*528*i}")
    p.wait(lg='all'); p("s_barrier")
    for i in range(9): p.lds(f"ds_read_b128 v[{48+4*i}:{51+4*i}], v6 offset:{1056*i}", f'r{i}')
    for i in range(9):
        p.wait(lg=f'r{i}')
        p.vmem(f"buffer_store_dwordx4 v[{48+4*i}:{51+4*i}], v7, s[36:39], s46 offen offset:{1024*(i%4)}")
        if i % 4 == 3: p("s_add_u32 s46, s46, 4096")
    p("s_endpgm")
    p.vm = []; p.lg = []

def set_J(p, sJ, rows, stride):
    for j in range(8): p(f"s_mov_b32 s{sJ+j}, {rows[j]*stride}")

def gather_frags(p, n, src, sJ, vvoff, s_base, dbase, dst, vlane16, s_dst, ddst, vt=16, batch=3):
    done = 0
    while done < n:
        b = min(batch, n - done)
        for f in range(b):
            p(f"v_add_u32 v{vt+48+f}, s{s_base}, v{vvoff}")
            for j in range(8):
                hi = "_hi" if j & 1 else ""
                p.vmem(f"buffer_load_short_d16{hi} v{vt+8*f+j}, v{vt+48+f}, s[{src}:{src+3}], s{sJ+j} offen", f'g{f}')
            p(f"s_add_u32 s{s_base}, s{s_base}, {dbase}")
        for f in range(b):
            p.wait(vm=f'g{f}')
            for d in range(4): p(f"v_or_b32 v{vt+32+4*f+d}, v{vt+8*f+2*d}, v{vt+8*f+2*d+1}")
            p.vmem(f"buffer_store_dwordx4 v[{vt+32+4*f}:{vt+35+4*f}], v{vlane16}, s[{dst}:{dst+3}], s{s_dst} offen")
            p(f"s_add_u32 s{s_dst}, s{s_dst}, {ddst}")
        done += b

NAT = list(range(8))
PERM = [8*(j>>2)+(j&3) for j in range(8)]

def gen_k0():
    p = Prog()
    N_GEMV, N_LN, N_WQ, N_WO, N_W1, N_W2 = 108, 64, 54, 18, 288, 144
    b_ln = N_GEMV; b_wq = b_ln + N_LN; b_wo = b_wq + N_WQ; b_w1 = b_wo + N_WO; b_w2 = b_w1 + N_W1; end = b_w2 + N_W2
    p(f"s_cmp_ge_u32 s2, {end}\ns_cbranch_scc1 L0_exit")
    prologue(p)
    wave_id(p, 3)
    p("s_waitcnt lgkmcnt(0)")
    p(f"s_cmp_ge_u32 s2, {b_ln}\ns_cbranch_scc1 L0_ln")
    gemv_job(p, 2, "0")
    p.label("L0_ln")
    p(f"s_cmp_ge_u32 s2, {b_wq}\ns_cbranch_scc1 L0_shuf")
    p(f"s_sub_u32 s28, s2, {b_ln}")
    ln_job(p, 28, 3)
    p.label("L0_shuf")
    p("v_and_b32 v1, 63, v0\nv_lshlrev_b32 v2, 4, v1\nv_and_b32 v3, 31, v1\nv_lshrrev_b32 v4, 5, v1")
    p(f"s_cmp_ge_u32 s2, {b_wo}\ns_cbranch_scc1 L0_wo")
    srd(p, 32, S_WQKV, S_WQKV+1, 0, 576*1728*2)
    srd(p, 36, S_WS, S_WS+1, WQ, WQ_SZ)
    set_J(p, 48, NAT, 3456)
    p(f"s_sub_u32 s28, s2, {b_wq}")
    p(f"v_mul_u32_u24 v5, {8*3456}, v4")
    p(f"s_mul_i32 s29, s3, {9*16*3456}")
    p("s_cmp_ge_u32 s28, 32\ns_cbranch_scc1 L0_wq_r")
    p("v_lshrrev_b32 v6, 4, v3\nv_mul_u32_u24 v6, 18, v6\nv_and_b32 v7, 15, v3\nv_add_u32 v6, v6, v7")
    p("s_mul_i32 s30, s28, 72\ns_add_u32 s29, s29, s30")
    p("s_lshr_b32 s30, s28, 2\ns_mul_i32 s30, s30, 147456\ns_and_b32 s31, s28, 3\ns_lshl_b32 s31, s31, 10\ns_add_u32 s30, s30, s31")
    p("s_mul_i32 s31, s3, 36864\ns_add_u32 s30, s30, s31\ns_movk_i32 s56, 4096\ns_branch L0_wq_go")
    p.label("L0_wq_r")
    p("s_cmp_ge_u32 s28, 36\ns_cbranch_scc1 L0_wq_v")
    p("v_lshrrev_b32 v6, 1, v3\nv_mul_u32_u24 v6, 18, v6\nv_and_b32 v7, 1, v3\nv_add3_u32 v6, v6, v7, 16")
    p("s_sub_u32 s31, s28, 32\ns_mul_i32 s30, s31, 576\ns_add_u32 s29, s29, s30")
    p(f"s_lshl_b32 s31, s31, 10\ns_add_u32 s30, s31, {8*147456}")
    p("s_mul_i32 s31, s3, 36864\ns_add_u32 s30, s30, s31\ns_movk_i32 s56, 4096\ns_branch L0_wq_go")
    p.label("L0_wq_v")
    p("v_mov_b32 v6, v3")
    p("s_sub_u32 s31, s28, 36\ns_lshl_b32 s30, s31, 6\ns_add_u32 s29, s29, s30\ns_add_u32 s29, s29, 2304")
    p("s_mul_i32 s57, s31, 0x5556\ns_lshr_b32 s57, s57, 16")
    p("s_mul_i32 s58, s57, 3\ns_sub_u32 s58, s31, s58\ns_lshl_b32 s58, s58, 10")
    p(f"s_mul_i32 s30, s57, 110592\ns_add_u32 s30, s30, s58\ns_add_u32 s30, s30, {9*147456}")
    p("s_mul_i32 s31, s3, 27648\ns_add_u32 s30, s30, s31\ns_movk_i32 s56, 3072")
    p.label("L0_wq_go")
    p("v_lshl_add_u32 v5, v6, 1, v5")
    gather_frags(p, 9, 32, 48, 5, 29, 16*3456, 36, 2, 30, "s56")
    p("s_endpgm"); p.vm = []
    p.label("L0_wo")
    p(f"s_cmp_ge_u32 s2, {b_w1}\ns_cbranch_scc1 L0_w1")
    srd(p, 32, S_WO, S_WO+1, 0, 576*576*2)
    srd(p, 36, S_WS, S_WS+1, WOS, WOS_SZ)
    set_J(p, 48, PERM, 1152)
    p(f"s_sub_u32 s28, s2, {b_wo}")
    p("v_and_b32 v6, 0x13, v3\nv_and_b32 v7, 8, v3\nv_lshrrev_b32 v7, 1, v7\nv_or_b32 v6, v6, v7\nv_and_b32 v7, 4, v3\nv_lshlrev_b32 v7, 1, v7\nv_or_b32 v6, v6, v7")
    p(f"v_mul_u32_u24 v5, {4*1152}, v4\nv_lshl_add_u32 v5, v6, 1, v5")
    p(f"s_mul_i32 s29, s3, {8*18*1152}\ns_lshl_b32 s30, s28, 6\ns_add_u32 s29, s29, s30")
    p("s_lshr_b32 s30, s28, 1\ns_mul_i32 s30, s30, 73728\ns_and_b32 s31, s28, 1\ns_lshl_b32 s31, s31, 10\ns_add_u32 s57, s30, s31")
    p("s_lshl_b32 s31, s3, 14\ns_add_u32 s30, s57, s31")
    gather_frags(p, 8, 32, 48, 5, 29, 18*1152, 36, 2, 30, 2048)
    set_J(p, 48, [(j>>1)*18+(j&1) for j in range(8)], 1152)
    p(f"v_mul_u32_u24 v5, {72*1152}, v4\nv_lshl_add_u32 v5, v6, 1, v5")
    p(f"s_mul_i32 s29, s3, {144*1152}\ns_lshl_b32 s30, s28, 6\ns_add_u32 s29, s29, s30\ns_add_u32 s29, s29, {16*1152}")
    p(f"s_lshl_b32 s31, s3, 11\ns_add_u32 s30, s57, s31\ns_add_u32 s30, s30, {32*2048}")
    gather_frags(p, 1, 32, 48, 5, 29, 0, 36, 2, 30, 0)
    p("s_endpgm"); p.vm = []
    p.label("L0_w1")
    p(f"s_cmp_ge_u32 s2, {b_w2}\ns_cbranch_scc1 L0_w2")
    p(f"s_sub_u32 s28, s2, {b_w1}")
    p("s_and_b32 s31, s28, 1\ns_lshr_b32 s28, s28, 1")
    p("s_cmp_eq_u32 s31, 0")
    p(f"s_cselect_b32 s32, s{S_WG}, s{S_WU}\ns_cselect_b32 s33, s{S_WG+1}, s{S_WU+1}")
    p(f"s_mov_b32 s34, {576*4608*2}\ns_mov_b32 s35, 0x20000")
    srd(p, 36, S_WS, S_WS+1, W1, W1_SZ)
    set_J(p, 48, NAT, 9216)
    p(f"v_mul_u32_u24 v5, {8*9216}, v4\nv_lshl_add_u32 v5, v3, 1, v5")
    p(f"s_mul_i32 s29, s3, {144*9216}\ns_lshl_b32 s30, s28, 6\ns_add_u32 s29, s29, s30")
    p(f"s_mul_i32 s30, s28, 73728\ns_lshl_b32 s31, s31, 10\ns_add_u32 s30, s30, s31\ns_mul_i32 s31, s3, {9*2048}\ns_add_u32 s30, s30, s31")
    gather_frags(p, 9, 32, 48, 5, 29, 16*9216, 36, 2, 30, 2048)
    p("s_endpgm"); p.vm = []
    p.label("L0_w2")
    p(f"s_sub_u32 s28, s2, {b_w2}")
    srd(p, 32, S_WD, S_WD+1, 0, 4608*576*2)
    srd(p, 36, S_WS, S_WS+1, W2, W2_SZ)
    set_J(p, 48, PERM, 1152)
    p("v_and_b32 v3, 15, v1\nv_lshrrev_b32 v4, 4, v1")
    p("v_lshrrev_b32 v6, 1, v4\nv_lshlrev_b32 v6, 4, v6\nv_and_b32 v7, 1, v4\nv_lshl_add_u32 v6, v7, 2, v6\nv_mul_u32_u24 v6, 1152, v6")
    p("v_lshrrev_b32 v7, 2, v3\nv_lshlrev_b32 v7, 3, v7\nv_and_b32 v8, 3, v3\nv_add_u32 v7, v7, v8\nv_lshl_add_u32 v5, v7, 1, v6")
    p(f"s_mul_i32 s57, s28, {32*1152}\ns_mul_i32 s30, s3, 288\ns_add_u32 s57, s57, s30")
    p(f"s_mul_i32 s30, s3, {144*9216}\ns_mul_i32 s31, s28, 9216\ns_add_u32 s30, s30, s31")
    for b in range(4):
        p(f"s_add_u32 s29, s57, {64*b}")
        gather_frags(p, 2, 32, 48, 5, 29, 8, 36, 2, 30, 1024, batch=2)
    p("v_lshl_add_u32 v5, v3, 1, v6")
    p("s_add_u32 s29, s57, 256")
    gather_frags(p, 1, 32, 48, 5, 29, 0, 36, 2, 30, 1024)
    p.label("L0_exit")
    p("s_endpgm")
    return p.finalize(), dict(name="k0_kernel", grid=end, block=256, lds=72*528, vgpr=160, agpr=0)
```

```python
from asmlib import *
from layout import *
from k0 import prologue, wave_id
import math

def mfma32(d, a, b, c):
    return f"v_mfma_f32_32x32x16_bf16 {d}, {a}, {b}, {c}"

def kloop(p, nt, swap, ACT, ACC, COEF, TMP, HB, v_lane16, v_wrd, v_crd, s_act, s_w, s_m0, srd_act, srd_w, modulate, pre_barrier=None):
    NCH = 9; UP = 7
    def issue(c):
        p(f"s_add_u32 m0, s{s_m0}, {c*4*nt*1024}")
        for i in range(nt):
            p.vmem(f"buffer_load_dwordx4 v{v_lane16}, s[{srd_w}:{srd_w+3}], s{s_w} offen offset:{1024*i} lds", f'W{c}')
        p(f"s_add_u32 s{s_w}, s{s_w}, {4*nt*1024}")
        for i in range(4):
            r = ACT + 16*(c % UP) + 4*i
            p.vmem(f"buffer_load_dwordx4 {vr(r,4)}, v{v_lane16}, s[{srd_act}:{srd_act+3}], s{s_act} offen offset:{1024*i}", f'A{4*c+i}')
        p(f"s_add_u32 s{s_act}, s{s_act}, 4096")
    for c in range(UP): issue(c)
    if pre_barrier: pre_barrier()
    def actreg(s): return ACT + 16*((s//4) % UP) + 4*(s % 4)
    def rdW(s):
        for t in range(nt):
            off = (s*nt + t)*1024
            base = v_wrd + off // 65536
            p.lds(f"ds_read_b128 {ar(16*(s&1)+4*t,4)}, v{base} offset:{off % 65536}", f'w{s}')
    def rdC(s):
        for q in range(4):
            p.lds(f"ds_read_b128 {vr(COEF+16*(s&1)+4*q,4)}, v{v_crd} offset:{128*s+16*q}", f'c{s}')
    def mod_ops(s):
        c = COEF + 16*(s&1); x = actreg(s); hb = HB + 4*(s&1)
        L = [f"v_dot2_f32_bf16 v{TMP+j}, v{x+(j>>1)}, v{c+j}, v{c+8+j}" for j in range(8)]
        L += [f"v_cvt_pk_bf16_f32 v{hb+d}, v{TMP+2*d}, v{TMP+2*d+1}" for d in range(4)]
        return L
    def hreg(s): return vr(HB + 4*(s&1), 4) if modulate else vr(actreg(s), 4)
    p.wait(vm='W0', lg='all'); p("s_barrier")
    if modulate: rdC(0)
    rdW(0)
    if modulate:
        rdC(1)
        p.wait(vm='A0', lg='c0')
        for x in mod_ops(0): p(x)
    for s in range(36):
        nx = s + 1
        if nx < 36 and nx % 4 == 0:
            c = nx // 4
            p.wait(vm=f'W{c}'); p("s_barrier")
        if nx < 36: rdW(nx)
        fill = []
        if nx < 36 and modulate:
            p.wait(vm=f'A{nx}', lg=f'c{nx}')
            fill = mod_ops(nx)
        if not modulate: p.wait(vm=f'A{s}')
        p.wait(lg=f'w{s}')
        per = (len(fill) + nt - 1) // nt if fill else 0
        for t in range(nt):
            acc = vr(ACC + 16*t, 16); w = ar(16*(s&1) + 4*t, 4); cin = acc if s > 0 else "0"
            p(mfma32(acc, hreg(s), w, cin) if swap else mfma32(acc, w, hreg(s), cin))
            for x in fill[t*per:(t+1)*per]: p(x)
        if modulate and s + 2 < 36: rdC(s + 2)
        lastuse = (nx % 4 == 3) if modulate else (s % 4 == 3)
        cdone = (nx // 4) if modulate else (s // 4)
        if lastuse and cdone + UP < NCH: issue(cdone + UP)

def gen_k1():
    p = Prog()
    p("s_cmp_ge_u32 s2, 256\ns_cbranch_scc1 L1_exit")
    prologue(p)
    wave_id(p, 3)
    p("s_and_b32 s28, s2, 3\ns_lshl_b32 s28, s28, 2\ns_bfe_u32 s29, s2, 0x20003\ns_add_u32 s28, s28, s29")
    p("s_bfe_u32 s29, s2, 0x10002\ns_lshl_b32 s29, s29, 3\ns_lshr_b32 s30, s2, 5\ns_add_u32 s29, s29, s30")
    p("s_cmp_eq_u32 s29, 15\ns_cbranch_scc1 L1_exit")
    p("s_lshl_b32 s30, s28, 2\ns_add_u32 s30, s30, s3")
    p("v_and_b32 v1, 63, v0\nv_lshlrev_b32 v2, 4, v1")
    p("v_add_u32 v3, 0x10000, v2\nv_add_u32 v4, 0x20000, v2")
    p("v_lshrrev_b32 v6, 5, v1")
    CO = 147456
    p(f"v_lshlrev_b32 v5, 6, v6\nv_add_u32 v5, {CO}, v5")
    p("s_waitcnt lgkmcnt(0)")
    srd(p, 32, S_WS, S_WS+1, XN, XT_SZ)
    srd(p, 36, S_WS, S_WS+1, WQ, WQ_SZ)
    srd(p, 40, S_WS, S_WS+1, MOD, MOD_SZ)
    srd(p, 44, S_WS, S_WS+1, QM, KV + KV_SZ - QM)
    p("v_lshlrev_b32 v7, 4, v0")
    p.vmem("buffer_load_dwordx4 v[8:11], v7, s[40:43], 0 offen offset:2304", 'M')
    p.vmem("buffer_load_dwordx4 v[12:15], v7, s[40:43], 0 offen", 'M')
    p("s_mul_i32 s48, s30, 36864")
    ACT, ACC, COEF, TMP, HB = 24, 136, 200, 232, 240
    def pre_barrier():
        p.wait(vm='M')
        p("v_lshrrev_b32 v8, 16, v8\nv_lshrrev_b32 v10, 16, v10")
        p(f"v_lshrrev_b32 v16, 1, v0\nv_lshlrev_b32 v16, 6, v16\nv_and_b32 v17, 1, v0\nv_lshl_add_u32 v16, v17, 4, v16\nv_add_u32 v16, {CO}, v16")
        p("v_cmp_gt_u32 vcc, 144, v0\ns_and_saveexec_b64 s[52:53], vcc")
        p.lds("ds_write_b128 v16, v[8:11]")
        p.lds("ds_write_b128 v16, v[12:15] offset:32")
        p("s_mov_b64 exec, s[52:53]")
    p("s_cmp_ge_u32 s29, 9\ns_cbranch_scc1 L1_v")
    p("s_mul_i32 s49, s29, 147456\ns_lshl_b32 s50, s3, 12\ns_add_u32 s49, s49, s50")
    vm0, lg0 = list(p.vm), list(p.lg)
    kloop(p, 4, False, ACT, ACC, COEF, TMP, HB, 2, 2, 5, 48, 49, 50, 32, 36, True, pre_barrier)
    qs = 18**-0.5 * math.log2(math.e)
    p("s_cmp_eq_u32 s29, 8\ns_cbranch_scc1 L1_rem")
    p("s_and_b32 s51, s29, 3\ns_lshl_b32 s51, s51, 3")
    p("s_cmp_lt_u32 s29, 4\ns_cbranch_scc0 L1_k")
    p(f"s_mov_b32 s52, {f2h(qs)}\ns_mov_b32 s53, 65536\ns_lshl_b32 s54, s30, 10\ns_branch L1_main")
    p.label("L1_k")
    p(f"s_mov_b32 s52, 1.0\ns_mov_b32 s53, {KVH}\ns_lshr_b32 s54, s30, 3\ns_mul_i32 s54, s54, {KVC}\ns_and_b32 s55, s30, 7\ns_lshl_b32 s55, s55, 10\ns_add_u32 s54, s54, s55\ns_add_u32 s54, s54, {KV-QM}")
    p.label("L1_main")
    p("s_mul_i32 s55, s51, s53\ns_add_u32 s54, s54, s55")
    p("s_nop 7")
    for hh in range(8):
        a = ACC + 8*hh
        for j in range(8): p(f"v_mul_f32 v{a+j}, s52, v{a+j}")
        for d in range(4): p(f"v_cvt_pk_bf16_f32 v{ACT+4*hh+d}, v{a+2*d}, v{a+2*d+1}")
        p(f"buffer_store_dwordx4 {vr(ACT+4*hh,4)}, v2, s[44:47], s54 offen")
        if hh < 7: p("s_add_u32 s54, s54, s53")
    p("s_endpgm")
    p.label("L1_rem")
    p("v_and_b32 v7, 31, v1\nv_lshlrev_b32 v7, 2, v7")
    p("v_lshl_add_u32 v8, v6, 14, v7")
    p(f"v_mul_u32_u24 v9, {2*KVH}, v6\nv_add_u32 v9, v9, v7")
    p(f"s_lshl_b32 s52, s30, 7\ns_add_u32 s52, s52, {QR-QM}")
    p(f"s_lshr_b32 s54, s30, 3\ns_mul_i32 s54, s54, {KVC}\ns_and_b32 s55, s30, 7\ns_lshl_b32 s55, s55, 7\ns_add_u32 s54, s54, s55\ns_add_u32 s54, s54, {KV-QM+8192}")
    p(f"s_mov_b32 s56, {f2h(qs)}")
    p("s_nop 7")
    for t in range(4):
        for i in range(4):
            for jj in range(2):
                a = ACC + 16*t + 4*i + 2*jj
                head = 16*(t&1) + 4*i + jj
                if t < 2: p(f"v_mul_f32 v{a}, s56, v{a}\nv_mul_f32 v{a+1}, s56, v{a+1}")
                p(f"v_cvt_pk_bf16_f32 v{a}, v{a}, v{a+1}")
                if t < 2:
                    p(f"s_add_u32 s57, s52, {head*8192}\nbuffer_store_dword v{a}, v8, s[44:47], s57 offen")
                else:
                    p(f"s_add_u32 s57, s54, {head*KVH}\nbuffer_store_dword v{a}, v9, s[44:47], s57 offen")
    p("s_endpgm")
    p.label("L1_v")
    p.vm, p.lg = list(vm0), list(lg0)
    p(f"s_sub_u32 s51, s29, 9\ns_mul_i32 s49, s51, 110592\ns_add_u32 s49, s49, {9*147456}\ns_mul_i32 s50, s3, 3072\ns_add_u32 s49, s49, s50")
    kloop(p, 3, True, ACT, ACC, COEF, TMP, HB, 2, 2, 5, 48, 49, 50, 32, 36, True, pre_barrier)
    p(f"s_lshr_b32 s54, s30, 3\ns_mul_i32 s54, s54, {KVC}\ns_and_b32 s55, s30, 7\ns_mul_i32 s55, s55, 1216\ns_add_u32 s54, s54, s55\ns_add_u32 s54, s54, {KV-QM+9216}")
    p("s_mul_i32 s52, s51, 96")
    p("v_and_b32 v7, 31, v1\nv_add_u32 v7, s52, v7")
    p(f"s_mov_b32 s53, {KVH}")
    p("v_mov_b32 v20, 0x3f803f80\nv_mov_b32 v21, 0x3f803f80\nv_mov_b32 v22, 0x3f803f80\nv_mov_b32 v23, 0x3f803f80")
    for t in range(3):
        p(f"v_add_u32 v8, {32*t}, v7")
        p("v_mul_u32_u24 v9, 3641, v8\nv_lshrrev_b32 v9, 16, v9")
        p("v_mul_u32_u24 v10, 18, v9\nv_sub_u32 v10, v8, v10")
        p("v_mul_lo_u32 v11, v9, s53\nv_lshl_add_u32 v11, v10, 4, v11\nv_mul_u32_u24 v12, 304, v6\nv_add_u32 v11, v11, v12")
        for sg in range(2):
            a = ACC + 16*t + 8*sg; r = ACT + 8*t + 4*sg
            for d in range(4): p(f"v_cvt_pk_bf16_f32 v{r+d}, v{a+2*d}, v{a+2*d+1}")
            p(f"buffer_store_dwordx4 {vr(r,4)}, v11, s[44:47], s54 offen offset:{608*sg}")
        p("v_cmp_eq_u32 vcc, 17, v10\ns_and_saveexec_b64 s[56:57], vcc")
        p("buffer_store_dwordx4 v[20:23], v11, s[44:47], s54 offen offset:16")
        p("buffer_store_dwordx4 v[20:23], v11, s[44:47], s54 offen offset:624")
        p("s_mov_b64 exec, s[56:57]")
    p.label("L1_exit")
    p("s_endpgm")
    return p.finalize(), dict(name="k1_kernel", grid=256, block=256, lds=147456+4608, vgpr=248, agpr=32)
```

```python
from asmlib import *
from layout import *
from k0 import prologue, wave_id
from k1 import mfma32

def gen_k2():
    p = Prog()
    SP = 8*KVC
    vK, vR, vV, vK0, vR0, vV0 = 4, 5, 6, 7, 8, 9
    M0r, M1r = 10, 11
    Q0, Q1, QRr = 16, 20, 24
    KR = [26, 28]; KM = [32, 36]; V = [40, 48]
    P = 56; NEG = 72; S = [104, 136]; O0, O1 = 168, 184
    TMP = 200
    p("s_cmp_ge_u32 s2, 256\ns_cbranch_scc1 L2_exit")
    prologue(p)
    wave_id(p, 3)
    p("s_and_b32 s28, s2, 7\ns_lshl_b32 s28, s28, 2\ns_bfe_u32 s29, s2, 0x20003\ns_add_u32 s28, s28, s29")
    p("s_lshr_b32 s29, s2, 5\ns_lshl_b32 s29, s29, 3\ns_and_b32 s30, s3, 3\ns_lshl_b32 s30, s30, 1\ns_add_u32 s29, s29, s30")
    p("s_lshr_b32 s30, s3, 2")
    p("v_and_b32 v1, 63, v0\nv_lshlrev_b32 v2, 4, v1\nv_lshlrev_b32 v3, 2, v1")
    p("s_waitcnt lgkmcnt(0)")
    srd(p, 32, S_WS, S_WS+1, QM, QM_SZ)
    srd(p, 36, S_WS, S_WS+1, QR, QR_SZ)
    srd(p, 40, S_WS, S_WS+1, KV, KV_SZ)
    srd(p, 44, S_WS, S_WS+1, OF, XT_SZ)
    p("s_lshl_b32 s48, s28, 16\ns_lshl_b32 s49, s29, 10\ns_add_u32 s48, s48, s49")
    p.vmem(f"buffer_load_dwordx4 {vr(Q0,4)}, v2, s[32:35], s48 offen", 'Q')
    p.vmem(f"buffer_load_dwordx4 {vr(Q1,4)}, v2, s[32:35], s48 offen offset:1024", 'Q')
    p("s_lshl_b32 s48, s28, 13\ns_lshl_b32 s49, s29, 7\ns_add_u32 s48, s48, s49")
    p.vmem(f"buffer_load_dword v{QRr}, v3, s[36:39], s48 offen", 'Q')
    p(f"s_mul_i32 s48, s28, {KVH}\ns_lshl_b32 s49, s3, 10\ns_add_u32 s48, s48, s49")
    for n in range(19):
        p(f"s_add_u32 m0, s49, {n*8192}")
        p.vmem(f"buffer_load_dwordx4 v2, s[40:43], s48 offen lds", f'D{n}')
        if n < 18: p("s_add_u32 s48, s48, 8192")
    p(f"s_lshl_b32 s50, s30, 12\nv_add_u32 v{vK0}, s50, v2")
    p(f"v_and_b32 v12, 31, v1\nv_lshlrev_b32 v13, 2, v12\ns_lshl_b32 s50, s30, 9\ns_add_u32 s50, s50, 8192\nv_add_u32 v{vR0}, s50, v13")
    p(f"v_min_u32 v12, 18, v12\nv_lshlrev_b32 v12, 4, v12\nv_lshrrev_b32 v14, 5, v1\nv_mul_u32_u24 v14, 304, v14\nv_add_u32 v12, v12, v14")
    p(f"s_mul_i32 s50, s30, {8*608}\ns_add_u32 s50, s50, 9216\nv_add_u32 v{vV0}, s50, v12")
    p(f"v_mov_b32 v{QRr+1}, 0\nv_mov_b32 v{KR[0]+1}, 0\nv_mov_b32 v{KR[1]+1}, 0")
    p(f"v_mov_b32 v14, {SP}\nv_mov_b32 v15, 0")
    p("ds_write_b32 v14, v15")
    p("s_mov_b32 s51, 0")
    p.wait(vm='D2'); p("s_waitcnt lgkmcnt(0)\ns_barrier")
    def mf2b(d, kr, c): return f"v_mfma_f32_32x32x4_2b_bf16 {vr(d,32)}, {vr(kr,2)}, {vr(QRr,2)}, {c}"
    def qk(d, km, q): return mfma32(vr(d,16), vr(km,4), vr(q,4), vr(d,16))
    def rowmax(dst, s, first):
        if first:
            p(f"v_max3_f32 v{dst}, v{s}, v{s+1}, v{s+2}"); rest = list(range(3, 16))
            p(f"v_max_f32 v{dst}, v{dst}, v{s+15}"); rest = rest[:-1]
        else: rest = list(range(16))
        for i in range(0, len(rest), 2): p(f"v_max3_f32 v{dst}, v{dst}, v{s+rest[i]}, v{s+rest[i+1]}")
    def halfmax(r):
        p(f"v_mov_b32 v{TMP}, v{r}\nv_permlane32_swap_b32 v{TMP}, v{r}\nv_max_f32 v{r}, v{r}, v{TMP}")
    p(f"ds_read_b128 {vr(KM[0],4)}, v2\nds_read_b32 v{KR[0]}, v13 offset:8192\ns_waitcnt lgkmcnt(0)")
    p(mf2b(S[0], KR[0], "0")); p(qk(S[0], KM[0], Q0)); p(qk(S[0]+16, KM[0], Q1))
    rowmax(M0r, S[0], True); rowmax(M1r, S[0]+16, True)
    halfmax(M0r); halfmax(M1r)
    p.label("L2_start")
    p(f"v_mov_b32 v{vK}, v{vK0}\nv_mov_b32 v{vR}, v{vR0}\nv_mov_b32 v{vV}, v{vV0}")
    def rdK(n):
        b = n & 1; c = KVC if n >= 4 else 0; j = n & 3
        p(f"ds_read_b32 v{KR[b]}, v{vR} offset:{c+128*j}")
        p(f"ds_read_b128 {vr(KM[b],4)}, v{vK} offset:{c+1024*j}")
    def rdV(n):
        b = n & 1; c = KVC if n >= 4 else 0; j = n & 3
        p(f"ds_read_b128 {vr(V[b],4)}, v{vV} offset:{c+1216*j}")
        p(f"ds_read_b128 {vr(V[b]+4,4)}, v{vV} offset:{c+1216*j+608}")
    rdK(0); rdK(1); rdV(0)
    for i in range(16): p(f"v_sub_f32 v{NEG+i}, 0, v{M0r}\nv_sub_f32 v{NEG+16+i}, 0, v{M1r}")
    for i in range(32): p(f"v_mov_b32 v{O0+i}, 0")
    for i in range(4): p(f"v_mov_b32 v{P+12+i}, 0\nv_mov_b32 v{V[1]+4+i}, 0")
    p("s_waitcnt lgkmcnt(0)")
    p(mf2b(S[0], KR[0], vr(NEG,32))); p(qk(S[0], KM[0], Q0)); p(qk(S[0]+16, KM[0], Q1))
    p("s_mov_b32 s52, 0\ns_nop 9")
    p(".p2align 3")
    p.label("L2_loop")
    def pv(o, v, pp): return mfma32(vr(o,16), vr(v,4), vr(pp,4), vr(o,16))
    for j in range(4):
        b = j & 1; sc = S[b]; sn = S[b^1]
        def half(k):
            for e in range(4): p(f"v_exp_f32 v{sc+4*k+e}, v{sc+4*k+e}")
            for c in range(2): p(f"v_cvt_pk_bf16_f32 v{P+2*k+c}, v{sc+4*k+2*c}, v{sc+4*k+2*c+1}")
        p("s_waitcnt lgkmcnt(0)")
        p(mf2b(sn, KR[b^1], vr(NEG,32)))
        half(0); half(1)
        p(pv(O1, V[b^1]+4, P+12))
        half(2)
        p(pv(O0, V[b], P))
        if j == 2:
            p("s_cmp_lg_u32 s52, 0\ns_cbranch_scc1 L2_nobar\ns_waitcnt vmcnt(0)\ns_barrier")
            p.label("L2_nobar")
        rdV(j+1)
        half(3)
        p(qk(sn, KM[b^1], Q0))
        half(4)
        p(pv(O0, V[b]+4, P+4))
        p(f"ds_read_b32 v{KR[b]}, v{vR} offset:{(KVC if j+2>=4 else 0)+128*((j+2)&3)}")
        p(f"ds_read_b128 {vr(KM[b],4)}, v{vK} offset:{(KVC if j+2>=4 else 0)+1024*((j+2)&3)}")
        half(5)
        p(qk(sn+16, KM[b^1], Q1))
        half(6)
        p(pv(O1, V[b], P+8))
        if j == 3:
            p(f"v_add_u32 v{vK}, {KVC}, v{vK}\nv_add_u32 v{vR}, {KVC}, v{vR}\nv_add_u32 v{vV}, {KVC}, v{vV}")
            p("s_add_u32 s52, s52, 1\ns_cmp_lt_u32 s52, 8")
        half(7)
    p("s_cbranch_scc1 L2_loop")
    p(pv(O1, V[1]+4, P+12))
    p.vm = []
    p("s_waitcnt lgkmcnt(0)")
    p(f"v_add_f32 v{TMP}, abs(v{O0}), abs(v{O0+1})")
    for i in range(2, 10): p(f"v_add_f32 v{TMP}, v{TMP}, abs(v{O0+i})")
    for i in range(10): p(f"v_add_f32 v{TMP}, v{TMP}, abs(v{O1+i})")
    p(f"v_add_f32 v{TMP+1}, abs(v{O0+10}), abs(v{O1+10})")
    p(f"s_mov_b32 s53, {f2h(2.0**126)}\ns_mov_b32 s54, {f2h(2.0**64)}")
    p(f"v_cmp_nge_f32 vcc, s53, v{TMP}")
    p(f"v_cmp_nge_f32 s[56:57], s54, v{TMP+1}")
    p("s_or_b64 vcc, vcc, s[56:57]")
    p(f"v_mov_b32 v14, {SP}\nv_mov_b32 v15, 1")
    p("s_cbranch_vccz L2_good")
    p("ds_write_b32 v14, v15")
    p.label("L2_good")
    p("s_waitcnt lgkmcnt(0)\ns_barrier")
    p("ds_read_b32 v15, v14\ns_waitcnt lgkmcnt(0)\nv_readfirstlane_b32 s53, v15")
    p("s_andn2_b32 s53, s53, s51\ns_cmp_lg_u32 s53, 0\ns_cbranch_scc1 L2_slow")
    p("s_cmp_eq_u32 s30, 0\ns_cbranch_scc1 L2_noswap")
    for i in range(12): p(f"v_swap_b32 v{O0+i}, v{O1+i}")
    p.label("L2_noswap")
    p("s_mul_i32 s53, s3, 3072\nv_add_u32 v14, s53, v2\ns_xor_b32 s54, s3, 4\ns_mul_i32 s54, s54, 3072\nv_add_u32 v15, s54, v2")
    for i in range(3): p(f"ds_write_b128 v14, {vr(O1+4*i,4)} offset:{1024*i}")
    p("s_waitcnt lgkmcnt(0)\ns_barrier")
    for i in range(3): p(f"ds_read_b128 {vr(O1+4*i,4)}, v15 offset:{1024*i}")
    p("s_add_u32 s53, s29, s30\ns_mul_i32 s53, s53, 36864\ns_lshl_b32 s54, s28, 10\ns_add_u32 s54, s54, s53")
    p("s_lshr_b32 s55, s28, 3\ns_add_u32 s55, s55, 32\ns_lshl_b32 s55, s55, 10\ns_add_u32 s55, s55, s53")
    p("s_bfe_u32 s56, s28, 0x10002\ns_lshl_b32 s56, s56, 9\ns_add_u32 s55, s55, s56\ns_and_b32 s56, s28, 3\ns_lshl_b32 s56, s56, 2\ns_add_u32 s55, s55, s56")
    p("s_waitcnt lgkmcnt(0)")
    for i in range(11): p(f"v_add_f32 v{O0+i}, v{O0+i}, v{O1+i}")
    p(f"v_rcp_f32 v{O0+10}, v{O0+10}")
    for i in range(10): p(f"v_mul_f32 v{O0+i}, v{O0+i}, v{O0+10}")
    for d in range(5): p(f"v_cvt_pk_bf16_f32 v{P+d}, v{O0+2*d}, v{O0+2*d+1}")
    p(f"buffer_store_dwordx4 {vr(P,4)}, v2, s[44:47], s54 offen")
    p("s_mov_b32 exec_hi, 0")
    p(f"buffer_store_dword v{P+4}, v2, s[44:47], s55 offen")
    p("s_endpgm")
    p.label("L2_slow")
    p(f"v_mov_b32 v{vK}, v{vK0}\nv_mov_b32 v{vR}, v{vR0}\nv_mov_b32 v{M0r}, 0xff800000\nv_mov_b32 v{M1r}, 0xff800000\ns_mov_b32 s52, 0")
    p.label("L2_slow_loop")
    for j in range(4):
        p(f"ds_read_b32 v{KR[0]}, v{vR} offset:{128*j}\nds_read_b128 {vr(KM[0],4)}, v{vK} offset:{1024*j}\ns_waitcnt lgkmcnt(0)")
        p(mf2b(S[0], KR[0], "0")); p(qk(S[0], KM[0], Q0)); p(qk(S[0]+16, KM[0], Q1))
        rowmax(M0r, S[0], False); rowmax(M1r, S[0]+16, False)
    p(f"v_add_u32 v{vK}, {KVC}, v{vK}\nv_add_u32 v{vR}, {KVC}, v{vR}")
    p("s_add_u32 s52, s52, 1\ns_cmp_lt_u32 s52, 8\ns_cbranch_scc1 L2_slow_loop")
    halfmax(M0r); halfmax(M1r)
    p(f"s_lshl_b32 s53, s3, 9\ns_add_u32 s53, s53, {SP+64}\nv_lshlrev_b32 v14, 3, v1\nv_add_u32 v15, s53, v14")
    p(f"ds_write_b64 v15, v[{M0r}:{M1r}]")
    p(f"s_xor_b32 s53, s3, 4\ns_lshl_b32 s53, s53, 9\ns_add_u32 s53, s53, {SP+64}\nv_add_u32 v15, s53, v14")
    p(f"s_waitcnt lgkmcnt(0)\ns_barrier\nds_read_b64 v[{TMP}:{TMP+1}], v15\ns_waitcnt lgkmcnt(0)")
    p(f"v_max_f32 v{M0r}, v{M0r}, v{TMP}\nv_max_f32 v{M1r}, v{M1r}, v{TMP+1}")
    p("s_mov_b32 s51, 1\ns_branch L2_start")
    p.label("L2_exit")
    p("s_endpgm")
    return p.finalize(), dict(name="k2_kernel", grid=256, block=512, lds=163840, vgpr=208, agpr=0)
```

```python
from asmlib import *
from layout import *
from k0 import prologue, wave_id
from k1 import kloop

def gen_k3():
    p = Prog()
    p("s_cmp_ge_u32 s2, 144\ns_cbranch_scc1 L3_exit")
    prologue(p)
    wave_id(p, 3)
    p("s_lshr_b32 s29, s2, 3\ns_cmp_ge_u32 s29, 9\ns_cselect_b32 s30, 1, 0\ns_cselect_b32 s31, 9, 0\ns_sub_u32 s29, s29, s31")
    p("s_and_b32 s28, s2, 7\ns_lshl_b32 s28, s28, 1\ns_add_u32 s28, s28, s30")
    p("s_lshl_b32 s30, s28, 2\ns_add_u32 s30, s30, s3")
    p("v_and_b32 v1, 63, v0\nv_lshlrev_b32 v2, 4, v1\nv_add_u32 v3, 0x10000, v2\nv_lshrrev_b32 v6, 5, v1\nv_lshlrev_b32 v7, 5, v6")
    p("s_waitcnt lgkmcnt(0)")
    srd(p, 32, S_WS, S_WS+1, OF, XT_SZ)
    srd(p, 36, S_WS, S_WS+1, WOS, WOS_SZ)
    srd(p, 40, S_WS, S_WS+1, MOD, MOD_SZ)
    srd(p, 44, S_WS, S_WS+1, XF, XT_SZ)
    srd(p, 56, S_WS, S_WS+1, X2, XT_SZ)
    srd(p, 60, S_WS, S_WS+1, STATS, STATS_SZ)
    ACT, ACC, XR, GA, TMP = 16, 128, 160, 176, 208
    p("s_mul_i32 s48, s30, 36864")
    p("s_mul_i32 s49, s29, 73728\ns_lshl_b32 s50, s3, 11\ns_add_u32 s49, s49, s50")
    p("s_lshl_b32 s51, s29, 12\ns_add_u32 s51, s51, s48")
    p(f"s_lshl_b32 s52, s29, 8\ns_add_u32 s52, s52, {2*2304}")
    def pre():
        for i in range(4):
            p.vmem(f"buffer_load_dwordx4 {vr(XR+4*i,4)}, v2, s[44:47], s51 offen offset:{1024*i}", 'X')
        for i in range(4):
            for e in range(2):
                p.vmem(f"buffer_load_dwordx4 {vr(GA+8*i+4*e,4)}, v7, s[40:43], s52 offen offset:{64*i+16*e}", 'X')
    kloop(p, 2, False, ACT, ACC, None, None, None, 2, 2, None, 48, 49, 50, 32, 36, False, pre)
    p.wait(vm='X')
    p("s_mov_b32 s64, 0x3f803f80\ns_mov_b32 s65, 0x00003f80\ns_mov_b32 s66, 0x3f800000")
    for i in range(16):
        p(f"v_lshlrev_b32 v{TMP+2*i}, 16, v{XR+i}\nv_and_b32 v{TMP+2*i+1}, 0xffff0000, v{XR+i}")
    for i in range(32): p(f"v_fmac_f32 v{TMP+i}, v{GA+i}, v{ACC+i}")
    for i in range(16): p(f"v_cvt_pk_bf16_f32 v{XR+i}, v{TMP+2*i}, v{TMP+2*i+1}")
    for i in range(4):
        p(f"buffer_store_dwordx4 {vr(XR+4*i,4)}, v2, s[56:59], s51 offen offset:{1024*i}")
    p("v_mov_b32 v8, 0\nv_mov_b32 v9, 0")
    for i in range(16): p(f"v_dot2_f32_bf16 v{8+(i&1)}, v{XR+i}, s64, v{8+(i&1)}")
    def xsum(r):
        p(f"v_mov_b32 v10, v{r}\nv_permlane32_swap_b32 v10, v{r}\nv_add_f32 v{r}, v{r}, v10")
    p("v_add_f32 v8, v8, v9"); xsum(8)
    p(f"v_mul_f32 v8, {f2h(1/64)}, v8\nv_sub_f32 v11, 0, v8")
    for i in range(16):
        p(f"v_dot2_f32_bf16 v{TMP+2*i}, v{XR+i}, s65, v11\nv_dot2_f32_bf16 v{TMP+2*i+1}, v{XR+i}, s66, v11")
    p(f"v_mul_f32 v9, v{TMP}, v{TMP}\nv_mul_f32 v12, v{TMP+1}, v{TMP+1}")
    for i in range(2, 32): p(f"v_fmac_f32 v{9 if i%2==0 else 12}, v{TMP+i}, v{TMP+i}")
    p("v_add_f32 v9, v9, v12"); xsum(9)
    p("s_lshl_b32 s53, s29, 14\ns_lshl_b32 s54, s30, 8\ns_add_u32 s53, s53, s54\nv_lshlrev_b32 v13, 3, v1")
    p("s_mov_b32 exec_hi, 0")
    p("buffer_store_dwordx2 v[8:9], v13, s[60:63], s53 offen")
    p.label("L3_exit")
    p("s_endpgm")
    return p.finalize(), dict(name="k3_kernel", grid=144, block=256, lds=73728, vgpr=240, agpr=32)
```

```python
from asmlib import *
from layout import *
from k0 import prologue, wave_id
from k1 import mfma32
import math

def gen_k4():
    p = Prog()
    H, ACC, TMP, PK = 16, [160, 192], 224, 248
    CO = 147456
    p("s_cmp_ge_u32 s2, 256\ns_cbranch_scc1 L4_exit")
    prologue(p)
    wave_id(p, 3)
    p("s_and_b32 s28, s2, 1\ns_lshl_b32 s28, s28, 3\ns_bfe_u32 s29, s2, 0x30003\ns_add_u32 s28, s28, s29")
    p("s_bfe_u32 s29, s2, 0x20001\ns_lshl_b32 s29, s29, 2\ns_lshr_b32 s30, s2, 6\ns_add_u32 s29, s29, s30")
    p("s_lshl_b32 s30, s28, 2\ns_add_u32 s30, s30, s3")
    p("v_and_b32 v1, 63, v0\nv_lshlrev_b32 v2, 4, v1\nv_add_u32 v3, 0x10000, v2\nv_add_u32 v4, 0x20000, v2")
    p(f"v_lshrrev_b32 v6, 5, v1\nv_lshlrev_b32 v5, 6, v6\nv_add_u32 v5, {CO}, v5")
    p("v_and_b32 v7, 31, v1\nv_lshlrev_b32 v8, 3, v7")
    p("v_lshrrev_b32 v9, 4, v7\nv_lshlrev_b32 v9, 10, v9\nv_lshl_add_u32 v9, v6, 8, v9\nv_and_b32 v10, 15, v1\nv_lshl_add_u32 v9, v10, 4, v9")
    p("v_lshlrev_b32 v10, 4, v0")
    p("s_waitcnt lgkmcnt(0)")
    srd(p, 32, S_WS, S_WS+1, X2, XT_SZ)
    p(f"s_mul_i32 s48, s29, {9*73728}\ns_add_u32 s48, s48, {W1}")
    p(f"s_add_u32 s36, s{S_WS}, s48\ns_addc_u32 s37, s{S_WS+1}, 0\ns_mov_b32 s38, {9*73728}\ns_mov_b32 s39, 0x20000")
    srd(p, 40, S_WS, S_WS+1, MOD, MOD_SZ)
    srd(p, 44, S_WS, S_WS+1, STATS, STATS_SZ)
    srd(p, 56, S_WS, S_WS+1, AF, AF_SZ)
    p("s_lshl_b32 s49, s30, 8")
    ST = ACC[1]
    for c in range(9):
        p.vmem(f"buffer_load_dwordx2 {vr(ST+2*c,2)}, v8, s[44:47], s49 offen", 'S')
        if c < 8: p("s_add_u32 s49, s49, 16384")
    p.vmem(f"s_movk_i32 s50, {4*2304}\nbuffer_load_dwordx4 {vr(TMP,4)}, v10, s[40:43], s50 offen", 'M')
    p.vmem(f"s_movk_i32 s50, {3*2304}\nbuffer_load_dwordx4 {vr(TMP+4,4)}, v10, s[40:43], s50 offen", 'M')
    p("s_mul_i32 s48, s30, 36864")
    p("s_mul_i32 s50, s3, 6144\ns_mov_b32 s51, s50")
    p(f"s_mul_i32 s52, s29, {9*131072}\ns_lshl_b32 s53, s30, 11\ns_add_u32 s52, s52, s53")
    def dma_ops(n):
        b = (n % 6)*24576
        L = [f"s_add_u32 m0, s50, {b}"]
        L += [('vm', f"buffer_load_dwordx4 v2, s[36:39], s51 offen offset:{1024*i} lds", f'W{n}') for i in range(4)]
        L += [f"s_add_u32 m0, s50, {b+4096}", "s_add_u32 s53, s51, 4096"]
        L += [('vm', f"buffer_load_dwordx4 v2, s[36:39], s53 offen offset:{1024*i} lds", f'W{n}') for i in range(2)]
        L += ["s_add_u32 s51, s51, 24576"]
        return L
    def emit(x):
        if isinstance(x, tuple):
            if x[0] == 'vm': p.vmem(x[1], x[2])
            elif x[0] == 'lds': p.lds(x[1], x[2])
            elif x[0] == 'wait': p.wait(**x[1])
        else: p(x)
    def act(s0, s1):
        for s in range(s0, s1):
            p.vmem(f"buffer_load_dwordx4 {vr(H+4*s,4)}, v2, s[32:35], s48 offen offset:{1024*(s%4)}", f'A{s}')
            if s % 4 == 3: p("s_add_u32 s48, s48, 4096")
    for x in dma_ops(0): emit(x)
    act(0, 12)
    for x in dma_ops(1): emit(x)
    act(12, 24)
    for x in dma_ops(2): emit(x)
    act(24, 32)
    p.wait(vm='S')
    act(32, 36)
    p(f"v_add_f32 v11, v{ST}, v{ST+2}")
    for c in range(2, 9): p(f"v_add_f32 v11, v11, v{ST+2*c}")
    p(f"v_mul_f32 v11, {f2h(1/9)}, v11")
    p(f"v_add_f32 v12, v{ST+1}, v{ST+3}")
    for c in range(2, 9): p(f"v_add_f32 v12, v12, v{ST+2*c+1}")
    for c in range(9): p(f"v_sub_f32 v{ST+2*c}, v{ST+2*c}, v11")
    p(f"v_mul_f32 v13, v{ST}, v{ST}")
    for c in range(1, 9): p(f"v_fmac_f32 v13, v{ST+2*c}, v{ST+2*c}")
    p(f"v_fmac_f32 v12, {f2h(64.0)}, v13")
    p(f"v_mov_b32 v13, {f2h(1e-5)}\nv_fmac_f32 v13, {f2h(1/576)}, v12\nv_rsq_f32 v12, v13")
    p("v_mul_f32 v14, v11, v12\nv_sub_f32 v14, 0, v14")
    p.wait(vm='M')
    p(f"v_lshrrev_b32 v15, 1, v0\nv_lshlrev_b32 v15, 6, v15\nv_and_b32 v13, 1, v0\nv_lshl_add_u32 v15, v13, 4, v15\nv_add_u32 v15, {CO}, v15")
    p("v_cmp_gt_u32 vcc, 144, v0\ns_and_saveexec_b64 s[54:55], vcc")
    p.lds(f"ds_write_b128 v15, {vr(TMP,4)}")
    p.lds(f"ds_write_b128 v15, {vr(TMP+4,4)} offset:32")
    p("s_mov_b64 exec, s[54:55]")
    for x in dma_ops(3): emit(x)
    def rdW(g):
        n = g // 12; off = (n % 6)*24576 + (g % 12)*2048
        return [('lds', f"ds_read_b128 {ar(8*(g%4)+4*m,4)}, v{2+(off+1024*m)//65536} offset:{(off+1024*m)%65536}", f'w{g%4}') for m in range(2)]
    def rdC(s):
        return [('lds', f"ds_read_b128 {vr(ACC[1]+16*(s&1)+4*q,4)}, v5 offset:{128*s+16*q}", f'c{s}') for q in range(4)]
    def ln_ops(s):
        c = ACC[1] + 16*(s&1); x = H + 4*s
        L = []
        for d in range(4): L += [f"v_lshlrev_b32 v{TMP+2*d}, 16, v{x+d}", f"v_and_b32 v{TMP+2*d+1}, 0xffff0000, v{x+d}"]
        for d in range(4): L += [f"v_pk_fma_f32 {vr(TMP+2*d,2)}, {vr(TMP+2*d,2)}, v[12:13], v[14:15] op_sel_hi:[1,0,0]"]
        for d in range(4): L += [f"v_pk_fma_f32 {vr(TMP+2*d,2)}, {vr(TMP+2*d,2)}, {vr(c+2*d,2)}, {vr(c+8+2*d,2)}"]
        for d in range(4): L += [f"v_cvt_pk_bf16_f32 v{x+d}, v{TMP+2*d}, v{TMP+2*d+1}"]
        return L
    C1 = -2*math.sqrt(2/math.pi)*math.log2(math.e); C2 = C1*0.044715
    p(f"s_mov_b32 s60, {f2h(C2)}\nv_mov_b32 v10, {f2h(C1)}")
    def gelu_ops(a):
        L = []
        for q in range(4):
            r = [a+4*q+e for e in range(4)]; t = [TMP+4*(q&1)+e for e in range(4)]; gu = [TMP+8+4*(q&1)+e for e in range(4)]
            for e in range(4): L.append(f"v_mul_f32 v{t[e]}, v{r[e]}, v{r[e]}")
            for e in range(4): L.append(f"v_fma_f32 v{t[e]}, v{t[e]}, s60, v10")
            for e in range(4): L.append(f"v_mul_f32 v{t[e]}, v{t[e]}, v{r[e]}")
            for e in range(4): L += [f"v_exp_f32 v{t[e]}, v{t[e]}", f"v_mul_f32 v{gu[e]}, v{r[e]}, v{r[e]+16}"]
            for e in range(4): L.append(f"v_add_f32 v{t[e]}, 1.0, v{t[e]}")
            for e in range(4): L.append(f"v_rcp_f32 v{t[e]}, v{t[e]}")
            for e in range(4): L.append(f"v_mul_f32 v{gu[e]}, v{gu[e]}, v{t[e]}")
            for c in range(2): L.append(f"v_cvt_pk_bf16_f32 v{PK+2*q+c}, v{gu[2*c]}, v{gu[2*c+1]}")
            if q & 1:
                L.append(('vm', f"buffer_store_dwordx4 {vr(PK+4*(q>>1),4)}, v9, s[56:59], s52 offen offset:{512*(q>>1)}", 'st'))
        L.append("s_add_u32 s52, s52, 131072")
        return L
    def cost(x):
        t = x[1] if isinstance(x, tuple) else x
        return 2 if isinstance(t, str) and (t.startswith('v_exp') or t.startswith('v_rcp')) else 1
    def do_pass(ps, first=False):
        a = ACC[ps & 1]
        fill = [] if first else gelu_ops(ACC[(ps+1) & 1])
        tot = sum(cost(x) for x in fill); done = 0; fi = 0
        dmaq = []
        for s in range(36):
            g = 36*ps + s
            if first:
                if s + 1 < 36:
                    p.wait(vm=f'A{s+1}', lg=f'c{s+1}')
                    lf = ln_ops(s+1)
                else: lf = []
            p.wait(lg=f'w{g%4}', force=not first)
            for m in range(2):
                acc = vr(a+16*m, 16)
                p(mfma32(acc, ar(8*(g%4)+4*m, 4), vr(H+4*s, 4), acc if s else "0"))
                if m == 0 and (g+3) % 12 == 0:
                    n = (g+3)//12
                    p.wait(vm=f'W{n}', force=True); p("s_barrier")
                    dmaq = dma_ops(n+4)
                emit(rdW(g+3)[m])
                if first:
                    for x in lf[10*m:10*m+10]: p(x)
                else:
                    k = 2*s + m
                    target = tot*(k-3)/66.0
                    while fi < len(fill) and done < target:
                        emit(fill[fi]); done += cost(fill[fi]); fi += 1
                while dmaq:
                    x = dmaq.pop(0); emit(x)
                    if isinstance(x, tuple): break
            if first and s + 2 < 36:
                for x in rdC(s+2): emit(x)
        while fi < len(fill): emit(fill[fi]); fi += 1
        while dmaq: emit(dmaq.pop(0))
    p.wait(vm='W0', lg='all'); p("s_barrier")
    for x in dma_ops(4): emit(x)
    for x in rdC(0) + rdW(0) + rdC(1) + rdW(1) + rdW(2): emit(x)
    p.wait(vm='A0', lg='c0')
    for x in ln_ops(0): p(x)
    do_pass(0, first=True)
    p("s_mov_b32 s61, 0")
    p(".p2align 3")
    p.label("L4_loop")
    i0 = len(p.items)
    do_pass(1); do_pass(2)
    i1 = len(p.items)
    do_pass(3); do_pass(4)
    merge_loop(p, i0, i1)
    p("s_add_u32 s61, s61, 1\ns_cmp_lt_u32 s61, 4\ns_cbranch_scc1 L4_loop")
    for x in gelu_ops(ACC[0]): emit(x)
    p.label("L4_exit")
    p("s_endpgm")
    return p.finalize(), dict(name="k4_kernel", grid=256, block=256, lds=147456+4608, vgpr=256, agpr=32)
```

```python
from asmlib import *
from layout import *
from k0 import prologue, wave_id

def mfma16(d, a, b, c): return f"v_mfma_f32_16x16x32_bf16 {d}, {a}, {b}, {c}"

def gen_k5():
    p = Prog()
    ACC, AR = 16, 88
    p("s_cmp_ge_u32 s2, 256\ns_cbranch_scc1 L5_exit")
    prologue(p)
    wave_id(p, 3)
    p("s_and_b32 s31, s2, 3")
    p("s_bfe_u32 s28, s2, 0x10002\ns_lshl_b32 s28, s28, 3\ns_bfe_u32 s29, s2, 0x30003\ns_add_u32 s28, s28, s29")
    p("s_lshr_b32 s29, s2, 6")
    p("s_lshl_b32 s30, s28, 2\ns_add_u32 s30, s30, s3")
    p("v_and_b32 v1, 63, v0\nv_lshlrev_b32 v2, 4, v1\nv_mov_b32 v3, v2")
    p("s_waitcnt lgkmcnt(0)")
    p(f"s_add_u32 s32, s{S_WS}, {hex(AF)}\ns_addc_u32 s33, s{S_WS+1}, 0\ns_add_u32 s34, s31, 1\ns_mul_i32 s34, s34, {36*131072}\ns_mov_b32 s35, 0x20000")
    p(f"s_mul_i32 s48, s29, {144*9216}\ns_mul_i32 s49, s31, {36*9216}\ns_add_u32 s48, s48, s49\ns_add_u32 s48, s48, {hex(W2)}")
    p(f"s_add_u32 s36, s{S_WS}, s48\ns_addc_u32 s37, s{S_WS+1}, 0\ns_mov_b32 s38, {36*9216}\ns_mov_b32 s39, 0x20000")
    srd(p, 40, S_WS, S_WS+1, PART, PART_SZ)
    p(f"s_mul_i32 s48, s31, {36*131072}\ns_lshl_b32 s49, s30, 11\ns_add_u32 s48, s48, s49")
    p("s_mul_i32 s50, s3, 9216\ns_mov_b32 s51, s50\ns_mov_b32 s52, s50")
    p("s_mov_b32 s54, 0")
    def emit(x):
        if isinstance(x, tuple):
            if x[0] == 'vm': p.vmem(x[1], x[2])
            elif x[0] == 'lds': p.lds(x[1], x[2])
        else: p(x)
    def dma_ops(n):
        L = []
        for k, cnt in ((0, 4), (1, 4), (2, 1)):
            L += [f"s_add_u32 m0, s52, {4096*k}", f"s_add_u32 s53, s51, {4096*k}"]
            L += [('vm', f"buffer_load_dwordx4 v2, s[36:39], s53 offen offset:{1024*i} lds", f'W{n}') for i in range(cnt)]
        L += ["s_add_u32 s51, s51, 36864", "s_add_u32 s52, s52, 36864", f"s_cmp_ge_u32 s52, {4*36864}", f"s_cselect_b32 s52, s50, s52"]
        return L
    def a_ops(g):
        r = AR + 8*(g % 12)
        return [('vm', f"buffer_load_dwordx4 {vr(r,4)}, v2, s[32:35], s48 offen", f'A{g}'),
                ('vm', f"buffer_load_dwordx4 {vr(r+4,4)}, v2, s[32:35], s48 offen offset:1024", f'A{g}'),
                "s_add_u32 s48, s48, 131072"]
    for x in dma_ops(0): emit(x)
    for g in range(4):
        for x in a_ops(g): emit(x)
    for x in dma_ops(1): emit(x)
    for g in range(4, 12):
        for x in a_ops(g): emit(x)
    for i in range(72): p(f"v_mov_b32 v{ACC+i}, 0")
    PD = 6
    def rdW(f):
        return ('lds', f"ds_read_b128 {ar(4*(f%9),4)}, v3 offset:{(f%36)*1024}", f'w{f}')
    p.wait(vm='W0'); p("s_barrier")
    for x in dma_ops(2): emit(x)
    for f in range(PD): emit(rdW(f))
    def body(it):
        dmaq = []
        for g in range(12*it, 12*it+12):
            p.wait(vm=f'A{g}', force=True)
            for t in range(9):
                f = 9*g + t
                p.wait(lg=f'w{f}', force=True)
                for tt in range(2):
                    acc = vr(ACC + 4*(9*tt+t), 4)
                    p(mfma16(acc, ar(4*t, 4), vr(AR+8*(g%12)+4*tt, 4), acc))
                    if tt == 0:
                        nf = f + PD
                        if nf % 36 == 0:
                            n = nf // 36
                            p.wait(vm=f'W{n}', force=True); p("s_barrier")
                            p(f"s_add_u32 s54, s54, 36864\ns_cmp_ge_u32 s54, {4*36864}\ns_cselect_b32 s54, 0, s54\nv_add_u32 v3, s54, v2")
                            dmaq = dma_ops(n+2)
                        emit(rdW(nf))
                    else:
                        while dmaq:
                            x = dmaq.pop(0); emit(x)
                            if isinstance(x, tuple): break
            for x in a_ops(g+12): emit(x)
        while dmaq: emit(dmaq.pop(0))
    p("s_mov_b32 s61, 0")
    p(".p2align 3")
    p.label("L5_loop")
    i0 = len(p.items); body(0); i1 = len(p.items); body(1); merge_loop(p, i0, i1)
    p("s_add_u32 s61, s61, 1\ns_cmp_lt_u32 s61, 3\ns_cbranch_scc1 L5_loop")
    p("s_lshl_b32 s48, s31, 4\ns_add_u32 s48, s48, s28\ns_lshl_b32 s48, s48, 2\ns_add_u32 s48, s48, s29\ns_lshl_b32 s48, s48, 2\ns_add_u32 s48, s48, s3\ns_mul_i32 s48, s48, 18432")
    for i in range(18):
        p(f"buffer_store_dwordx4 {vr(ACC+4*i,4)}, v2, s[40:43], s48 offen offset:{1024*(i%4)}")
        if i % 4 == 3: p("s_add_u32 s48, s48, 4096")
    p.label("L5_exit")
    p("s_endpgm")
    return p.finalize(), dict(name="k5_kernel", grid=256, block=256, lds=147456, vgpr=184, agpr=36)

def gen_k6():
    p = Prog()
    p("s_cmp_ge_u32 s2, 256\ns_cbranch_scc1 L6_exit")
    prologue(p)
    wave_id(p, 3)
    p("s_bfe_u32 s29, s2, 0x20002\ns_lshr_b32 s28, s2, 4\ns_lshl_b32 s30, s28, 2\ns_and_b32 s31, s2, 3\ns_add_u32 s30, s30, s31")
    p("v_and_b32 v1, 63, v0\nv_lshlrev_b32 v2, 4, v1\nv_and_b32 v3, 15, v1\nv_lshrrev_b32 v4, 4, v1")
    p("s_waitcnt lgkmcnt(0)")
    srd(p, 32, S_WS, S_WS+1, PART, PART_SZ)
    srd(p, 36, S_WS, S_WS+1, X2, XT_SZ)
    srd(p, 40, S_WS, S_WS+1, MOD, MOD_SZ)
    srd(p, 44, S_OUT, S_OUT+1, 0, T*D*2)
    p("s_and_b32 s48, s3, 1\ns_lshr_b32 s49, s3, 1")
    p("s_mul_i32 s50, s2, 18432\ns_mul_i32 s51, s48, 9216\ns_add_u32 s50, s50, s51\ns_lshl_b32 s51, s49, 11\ns_add_u32 s50, s50, s51")
    p("s_lshl_b32 s52, s48, 4\nv_add_u32 v5, s52, v3")
    p("s_mul_i32 s53, s29, 144\ns_lshl_b32 s54, s49, 5\ns_add_u32 s53, s53, s54")
    p("s_lshl_b32 s54, s30, 5\nv_add_u32 v6, s54, v5\nv_mul_u32_u24 v6, 1152, v6")
    p("s_mul_i32 s55, s30, 36864")
    p(f"s_mov_b32 s56, {5*2304}")
    p("s_cmp_eq_u32 s49, 4\ns_cbranch_scc1 L6_single")
    for ks in range(4):
        p.vmem(f"buffer_load_dwordx4 {vr(16+8*ks,4)}, v2, s[32:35], s50 offen", 'P')
        p.vmem(f"buffer_load_dwordx4 {vr(20+8*ks,4)}, v2, s[32:35], s50 offen offset:1024", 'P')
        if ks < 3: p(f"s_add_u32 s50, s50, {256*18432}")
    p("v_lshl_add_u32 v7, v4, 3, s53")
    p("v_lshlrev_b32 v8, 6, v7\nv_lshl_add_u32 v8, v5, 4, v8")
    p.vmem("buffer_load_dwordx4 v[48:51], v8, s[36:39], s55 offen", 'P')
    p("v_lshlrev_b32 v9, 2, v7")
    p.vmem("buffer_load_dwordx4 v[52:55], v9, s[40:43], s56 offen", 'P')
    p.vmem("buffer_load_dwordx4 v[56:59], v9, s[40:43], s56 offen offset:16", 'P')
    p("v_lshl_add_u32 v6, v7, 1, v6")
    p.wait(vm='P')
    for i in range(8): p(f"v_add_f32 v{16+i}, v{16+i}, v{24+i}\nv_add_f32 v{32+i}, v{32+i}, v{40+i}")
    for i in range(8): p(f"v_add_f32 v{16+i}, v{16+i}, v{32+i}")
    for i in range(4): p(f"v_lshlrev_b32 v{24+2*i}, 16, v{48+i}\nv_and_b32 v{25+2*i}, 0xffff0000, v{48+i}")
    for i in range(8): p(f"v_fmac_f32 v{24+i}, v{16+i}, v{52+i}")
    for i in range(4): p(f"v_cvt_pk_bf16_f32 v{32+i}, v{24+2*i}, v{25+2*i}")
    p("buffer_store_dwordx4 v[32:35], v6, s[44:47], 0 offen")
    p("s_endpgm")
    p.label("L6_single")
    for ks in range(4):
        p.vmem(f"buffer_load_dwordx4 {vr(16+4*ks,4)}, v2, s[32:35], s50 offen", 'P')
        if ks < 3: p(f"s_add_u32 s50, s50, {256*18432}")
    p("v_lshl_add_u32 v7, v4, 2, s53")
    p("v_lshrrev_b32 v8, 3, v7\nv_lshlrev_b32 v8, 9, v8\nv_lshl_add_u32 v8, v5, 4, v8\nv_and_b32 v9, 4, v7\nv_lshl_add_u32 v8, v9, 1, v8")
    p.vmem("buffer_load_dwordx2 v[48:49], v8, s[36:39], s55 offen", 'P')
    p("v_lshlrev_b32 v9, 2, v7")
    p.vmem("buffer_load_dwordx4 v[52:55], v9, s[40:43], s56 offen", 'P')
    p("v_lshl_add_u32 v6, v7, 1, v6")
    p.wait(vm='P')
    for i in range(4): p(f"v_add_f32 v{16+i}, v{16+i}, v{20+i}\nv_add_f32 v{24+i}, v{24+i}, v{28+i}")
    for i in range(4): p(f"v_add_f32 v{16+i}, v{16+i}, v{24+i}")
    for i in range(2): p(f"v_lshlrev_b32 v{24+2*i}, 16, v{48+i}\nv_and_b32 v{25+2*i}, 0xffff0000, v{48+i}")
    for i in range(4): p(f"v_fmac_f32 v{24+i}, v{16+i}, v{52+i}")
    for i in range(2): p(f"v_cvt_pk_bf16_f32 v{32+i}, v{24+2*i}, v{25+2*i}")
    p("buffer_store_dwordx2 v[32:33], v6, s[44:47], 0 offen")
    p.label("L6_exit")
    p("s_endpgm")
    return p.finalize(), dict(name="k6_kernel", grid=256, block=640, lds=0, vgpr=64, agpr=0)
```

```python
T=2048; D=576; H=32; DH=18; F=4608
MOD   = 0x0000000; MOD_SZ = 6*576*4
STATS = 0x0010000; STATS_SZ = 9*2048*8
FLAGS = 0x0040000; FLAGS_SZ = 0x10000
XN    = 0x0100000; XT_SZ = 64*36*1024
XF    = 0x0400000
WQ    = 0x0700000; WQ_SZ = 54*36*1024
WOS   = 0x0900000; WOS_SZ = 18*36*1024
QM    = 0x0A00000; QM_SZ = 32*65536
QR    = 0x0C00000; QR_SZ = 32*8192
KVH   = 155648; KVC = 19456
KV    = 0x0D00000; KV_SZ = 32*KVH
OF    = 0x1200000
X2    = 0x1500000
W1    = 0x1800000; W1_SZ = 144*73728
W2    = 0x2300000; W2_SZ = 4*144*9216
AF    = 0x2900000; AF_SZ = 144*128*1024
PART  = 0x3C00000; PART_SZ = 4*2048*576*4
S_X=4; S_WQKV=6; S_WO=8; S_WG=12; S_WU=14; S_WD=16; S_C=18; S_WMOD=20; S_OUT=22; S_DBG=24; S_WS=26
```

```python
import sys
from asmlib import *
import k0, k1, k2, k3, k4, k5
def build(gens):
    hdr = open('adaLN_cond__softmax_full_mha__glu_gated_geglu__prompt.s.ref').read().split('; Override launch')[0]
    ks = [g() for g in gens]
    out = hdr
    for body, m in ks: out += f"; @launch kernel={m['name']} grid=({m['grid']},1,1) block=({m['block']},1,1) lds={m['lds']}\n"
    out += '.amdgcn_target "amdgcn-amd-amdhsa--gfx950"\n'
    descs = ''
    for body, m in ks:
        h, d = kernel_text(m['name'], body, m['vgpr'], m['agpr'])
        out += h; descs += d
    return out + descs
if __name__ == '__main__':
    txt = build([k0.gen_k0, k1.gen_k1, k2.gen_k2, k3.gen_k3, k4.gen_k4, k5.gen_k5, k5.gen_k6])
    dst = sys.argv[1] if len(sys.argv) > 1 else 'adaLN_cond__softmax_full_mha__glu_gated_geglu__prompt.s'
    open(dst, 'w').write(txt)
    print("written", dst, len(txt))
```

```python
import re

REG_RE = re.compile(r'^(-|abs\()?([vas])(\d+)\)?$')
RNG_RE = re.compile(r'^(-)?([vas])\[(\d+):(\d+)\]$')

def regs_of(op):
    op = op.strip()
    m = RNG_RE.match(op)
    if m: return [(m.group(2), i) for i in range(int(m.group(3)), int(m.group(4)) + 1)]
    m = REG_RE.match(op)
    if m: return [(m.group(2), int(m.group(3)))]
    if op == 'vcc': return [('s', 'vcc')]
    if op == 'exec': return [('s', 'exec')]
    if op == 'm0': return [('s', 'm0')]
    return []

TRANS = ('v_exp_f32', 'v_log_f32', 'v_rcp_f32', 'v_rsq_f32', 'v_sqrt_f32', 'v_sin_f32', 'v_cos_f32')
def mfma_passes(mn):
    if '32x32x4_2b' in mn: return 16
    if '32x32' in mn: return 8
    if '16x16' in mn: return 4
    raise ValueError(mn)

class Ins:
    def __init__(self, text):
        self.text = text
        t = text.split(';')[0].strip()
        parts = t.split(None, 1)
        self.mn = parts[0]
        rest = parts[1] if len(parts) > 1 else ''
        ops, depth, cur = [], 0, ''
        for ch in rest:
            if ch == '[': depth += 1
            if ch == ']': depth -= 1
            if ch == ',' and depth == 0: ops.append(cur.strip()); cur = ''
            else: cur += ch
        if cur.strip(): ops.append(cur.strip())
        self.mods = ''
        if ops:
            last = ops[-1].split(None, 1)
            ops[-1] = last[0]
            if len(last) > 1: self.mods = last[1]
        self.ops = ops
        mn = self.mn
        self.is_mfma = mn.startswith('v_mfma')
        self.is_valu = mn.startswith('v_') and not self.is_mfma
        self.is_trans = any(mn.startswith(x) for x in TRANS)
        self.is_ds = mn.startswith('ds_')
        self.is_vmem = mn.startswith('buffer_') or mn.startswith('global_')
        self.is_salu = mn.startswith('s_')
        self.is_dpp = 'dpp' in mn or 'row_' in self.mods or 'quad_perm' in self.mods
        self.is_perml = mn.startswith('v_permlane')
        R = [regs_of(o) for o in ops]
        rd, wr = [], []
        if self.is_mfma:
            wr = R[0]; self.srcA, self.srcB, self.srcC = R[1], R[2], R[3]; rd = R[1] + R[2] + R[3]
        elif self.is_valu:
            if mn.startswith('v_cmp'):
                wr = R[0]; rd = sum(R[1:], [])
                if mn.startswith('v_cmpx'): wr = wr + [('s', 'exec')]
            elif self.is_perml:
                wr = R[0] + R[1]; rd = R[0] + R[1]
            elif mn.startswith('v_add_co') or mn.startswith('v_sub_co') or mn.startswith('v_addc_co'):
                wr = R[0] + R[1]; rd = sum(R[2:], [])
            elif mn == 'v_nop':
                pass
            else:
                wr = R[0]; rd = sum(R[1:], [])
                if mn.startswith('v_fmac') or mn.startswith('v_dot2c') or 'UNUSED_PRESERVE' in self.mods or self.is_dpp or mn.startswith('v_writelane'):
                    rd = rd + R[0]
                if mn.startswith('v_cndmask') and len(ops) == 3: rd = rd + [('s', 'vcc')]
        elif self.is_ds:
            if mn.startswith('ds_read') or mn.startswith('ds_bpermute') or mn.startswith('ds_swizzle') or '_rtn' in mn:
                wr = R[0]; rd = sum(R[1:], [])
            else:
                rd = sum(R, [])
        elif self.is_vmem:
            lds = bool(re.search(r'\blds\b', self.mods)) or '_lds_' in mn
            self.lds = lds
            if ('load' in mn) and not lds:
                wr = R[0]; rd = sum(R[1:], [])
            elif 'atomic' in mn and 'sc0' in self.mods:
                wr = R[0]; rd = sum(R, [])
            else:
                rd = sum(R, [])
                if lds: rd = rd + [('s', 'm0')]
        elif self.is_salu:
            if mn.startswith('s_cmp') or mn.startswith('s_cbranch') or mn in ('s_branch', 's_waitcnt', 's_barrier', 's_nop', 's_endpgm', 's_setprio', 's_sleep') or mn.startswith('s_bitcmp'):
                rd = sum(R, [])
            else:
                wr = R[0] if R else []; rd = sum(R[1:], [])
                if 'saveexec' in mn: wr = wr + [('s', 'exec')]
        self.rd, self.wr = set(rd), set(wr)
        self.states = 1
        if mn == 's_nop': self.states = int(ops[0], 0) + 1

def need_states(p, c):
    n = 0
    pv = {r for r in p.wr if r[0] in 'va'}
    ps = {r for r in p.wr if r[0] == 's'}
    if p.is_valu:
        if c.is_mfma and (pv & c.rd): n = max(n, 2)
        if c.is_perml and (pv & c.rd): n = max(n, 2)
        if c.is_valu and c.is_dpp and (pv & c.rd): n = max(n, 2)
        if c.mn.startswith('v_readfirstlane') or c.mn.startswith('v_readlane'):
            if pv & c.rd: n = max(n, 1)
        if p.is_trans and c.is_valu and not c.is_trans and (pv & c.rd): n = max(n, 1)
        if p.is_trans and (c.is_vmem or c.is_ds) and (pv & c.rd): n = max(n, 1)
        if ('sdwa' in p.mn or 'op_sel' in p.mods and not p.mn.startswith('v_pk')) and c.is_valu and (pv & (c.rd | c.wr)): n = max(n, 1)
        if p.mn.startswith('v_dot2') and (pv & (c.rd | c.wr)):
            if not (c.mn == p.mn and c.is_valu and pv & set(regs_of(c.ops[-1] if not c.mn.startswith('v_dot2c') else c.ops[0])) and not (pv & set(regs_of(c.ops[1]) + regs_of(c.ops[2])))):
                n = max(n, 3)
        if ps:
            if c.is_vmem and (ps & c.rd): n = max(n, 5)
            if c.is_valu and (ps & c.rd): n = max(n, 2)
            if (c.mn.startswith('v_readlane') or c.mn.startswith('v_writelane')) and (ps & c.rd): n = max(n, 4)
            if ('s', 'exec') in ps:
                if c.is_mfma: n = max(n, 4)
                if c.is_dpp: n = max(n, 5)
                if c.is_perml or c.mn.startswith('v_read') : n = max(n, 4)
            if c.is_salu and (ps & c.rd): n = max(n, 1)
    if p.is_salu and ('s', 'm0') in p.wr and c.is_vmem and ('s', 'm0') in c.rd: n = max(n, 1)
    if p.is_mfma:
        ps_ = mfma_passes(p.mn)
        D = p.wr
        if c.is_mfma:
            if D & set(c.srcA + c.srcB): n = max(n, {4: 8, 8: 12, 16: 20}[ps_])
            if D & set(c.srcC):
                same = (set(c.srcC) == D and mfma_passes(c.mn) == ps_)
                if not same: n = max(n, {4: 6, 8: 10, 16: 18}[ps_])
            elif D & c.wr:
                n = max(n, {4: 6, 8: 10, 16: 18}[ps_])
        elif (c.is_valu or c.is_vmem or c.is_ds) and (D & (c.rd | c.wr)):
            n = max(n, {4: 8, 8: 12, 16: 20}[ps_])
        if c.is_valu and (set(p.srcC) & c.wr): n = max(n, {4: 3, 8: 7, 16: 15}[ps_])
        if (c.is_ds or c.is_vmem) and (set(p.srcC) & c.wr): n = max(n, {4: 3, 8: 7, 16: 15}[ps_])
    if p.is_vmem and 'store' in p.mn and ('x4' in p.mn or 'x3' in p.mn):
        data = set(regs_of(p.ops[0])) if p.mn.startswith('buffer') else set(regs_of(p.ops[1]))
        if data & c.wr: n = max(n, 2 if c.is_valu else 1)
    return n

class Prog:
    def __init__(self):
        self.items = []
        self.vm = []
        self.lg = []
    def __call__(self, text):
        for ln in text.split('\n'):
            ln = ln.strip()
            if not ln or ln.startswith(';'): continue
            if ln.endswith(':'): self.items.append(('l', ln[:-1]))
            elif ln.startswith('.'): self.items.append(('r', ln))
            else: self.items.append(('i', Ins(ln)))
    def label(self, l): self.items.append(('l', l))
    def vmem(self, text, tag=None):
        self(text); self.vm.append(tag)
    def lds(self, text, tag=None):
        self(text); self.lg.append(tag)
    def _n(self, q, tags):
        if not isinstance(tags, (list, tuple, set)): tags = [tags]
        last = -1
        for i, t in enumerate(q):
            if t in tags: last = i
        return last
    def wait(self, vm=None, lg=None, force=False):
        s = []
        if vm is not None:
            last = len(self.vm) - 1 if vm == 'all' else self._n(self.vm, vm)
            if last >= 0:
                n = len(self.vm) - 1 - last
                assert n <= 63, "vmcnt overflow %d" % n
                s.append(f"vmcnt({n})"); self.vm = self.vm[last + 1:]
            elif force: s.append(f"vmcnt({min(63, len(self.vm))})")
        if lg is not None:
            last = len(self.lg) - 1 if lg == 'all' else self._n(self.lg, lg)
            if last >= 0:
                n = len(self.lg) - 1 - last
                assert n <= 15, "lgkmcnt overflow %d" % n
                s.append(f"lgkmcnt({n})"); self.lg = self.lg[last + 1:]
            elif force: s.append(f"lgkmcnt({min(15, len(self.lg))})")
        if s: self("s_waitcnt " + " ".join(s))
    def finalize(self, backedges=True):
        out = []
        hist = []
        W = 24
        npad = 0
        def required(c, hist):
            need = 0; dist = 0
            for p in reversed(hist):
                k = need_states(p, c)
                if k - dist > need: need = k - dist
                dist += p.states
                if dist >= W: break
            return need
        label_pos = {}
        flat = []
        for kind, x in self.items:
            if kind == 'i':
                n = required(x, hist)
                while n > 0:
                    k = min(n, 16)
                    nop = Ins(f"s_nop {k-1}")
                    out.append(('i', nop)); hist.append(nop); flat.append(nop); n -= k; npad += 1
                out.append(('i', x)); hist.append(x); flat.append(x)
                hist = hist[-W:]
                if x.mn in ('s_endpgm', 's_branch'): hist = []
            else:
                if kind == 'l': label_pos[x] = len(flat)
                out.append((kind, x))
        errs = []
        idx = 0
        for i, x in enumerate(flat):
            if x.mn.startswith('s_cbranch') or x.mn == 's_branch':
                tgt = x.ops[0]
                if tgt in label_pos:
                    h = flat[max(0, i - W):i + 1]
                    for c in flat[label_pos[tgt]:label_pos[tgt] + W]:
                        n = required(c, h)
                        if n > 0: errs.append(f"branch-edge hazard -> {tgt}: {c.text} needs {n}")
                        h = h + [c]
                        if c.mn in ('s_endpgm', 's_branch'): break
        last = None
        NOSCC = ('s_mov', 's_movk', 's_mul_i32', 's_mul_hi', 's_cselect', 's_waitcnt', 's_barrier', 's_nop', 's_cbranch', 's_branch', 's_load', 's_memtime', 's_memrealtime', 's_setprio', 's_endpgm', 's_sleep', 's_getreg', 's_getpc')
        for x in flat:
            if x.mn.startswith('s_cselect') or x.mn.startswith('s_cbranch_scc'):
                if not (last and (last.mn.startswith('s_cmp') or last.mn.startswith('s_bitcmp'))): errs.append(f"SCC consumer {x.text} after {last.text if last else None}")
            if x.mn.startswith('s_addc') and not (last and last.mn.startswith('s_add_u32')): errs.append(f"addc after {last.text if last else None}")
            if x.is_salu and not any(x.mn.startswith(k) for k in NOSCC): last = x
        lastw = {}
        for x in flat:
            if x.is_vmem and x.mn.startswith('buffer'):
                q = [o for o in x.ops if re.match(r'^s\[\d+:\d+\]$', o)]
                d = regs_of(q[0])[0][1]
                w0, w1, w3 = lastw.get(d), lastw.get(d+1), lastw.get(d+3)
                ok1 = w1 is not None and (w1.mn in ('s_addc_u32', 's_load_dwordx16', 's_load_dwordx8') or (w1.mn in ('s_mov_b32', 's_cselect_b32') and re.match(r'^s\d+$', w1.ops[1])))
                ok0 = w0 is not None and (w0.mn in ('s_load_dwordx16', 's_load_dwordx8') or (w0.mn in ('s_mov_b32', 's_cselect_b32', 's_add_u32') and re.match(r'^s\d+$', w0.ops[1]) and int(w0.ops[1][1:]) < 28))
                ok3 = w3 is not None and w3.text.endswith('0x20000')
                if not (ok0 and ok1 and ok3): errs.append(f"SRD s[{d}] suspicious at {x.text}: {w0 and w0.text} | {w1 and w1.text} | {w3 and w3.text}")
            for r in x.wr:
                if r[0] == 's' and isinstance(r[1], int): lastw[r[1]] = x
        if errs: raise RuntimeError("\n".join(errs))
        self.npad = npad
        txt = []
        for kind, x in out:
            if kind == 'i': txt.append("    " + x.text)
            elif kind == 'l': txt.append(x + ":")
            else: txt.append(x)
        return "\n".join(txt)

def vr(a, n=1, f='v'):
    return f"{f}{a}" if n == 1 else f"{f}[{a}:{a+n-1}]"
def sr(a, n=1): return vr(a, n, 's')
def ar(a, n=1): return vr(a, n, 'a')

def srd(p, d, base_lo, base_hi, off, size):
    if off:
        p(f"s_add_u32 s{d}, s{base_lo}, {hex(off)}")
        p(f"s_addc_u32 s{d+1}, s{base_hi}, 0")
    else:
        p(f"s_mov_b32 s{d}, s{base_lo}")
        p(f"s_mov_b32 s{d+1}, s{base_hi}")
    p(f"s_mov_b32 s{d+2}, {hex(size)}")
    p(f"s_mov_b32 s{d+3}, 0x20000")

def kernel_text(name, body, vgpr, agpr=0, sgpr=100):
    acc = (vgpr + 3) // 4 * 4
    nfv = acc + agpr if agpr else vgpr
    head = f""".text
.globl {name}
.p2align 8
.type {name},@function
{name}:
{body}
"""
    desc = f""".section .rodata,"a"
.p2align 6
.amdhsa_kernel {name}
  .amdhsa_next_free_vgpr {nfv}
  .amdhsa_next_free_sgpr {sgpr}
  .amdhsa_accum_offset {acc}
  .amdhsa_group_segment_fixed_size 0
  .amdhsa_kernarg_size 96
  .amdhsa_user_sgpr_count 2
  .amdhsa_user_sgpr_kernarg_segment_ptr 1
  .amdhsa_system_sgpr_workgroup_id_x 1
  .amdhsa_float_denorm_mode_32 3
.end_amdhsa_kernel
"""
    return head, desc

import struct
def f2h(x): return hex(struct.unpack('<I', struct.pack('<f', x))[0])

def merge_loop(p, i0, i1):
    A = p.items[i0:i1]; B = p.items[i1:]
    assert len(A) == len(B), (len(A), len(B))
    for k, (x, y) in enumerate(zip(A, B)):
        if x[0] != 'i':
            assert x == y; continue
        if x[1].text == y[1].text: continue
        assert x[1].mn == 's_waitcnt' and y[1].mn == 's_waitcnt', (x[1].text, y[1].text)
        fx = dict(re.findall(r'(\w+)\((\d+)\)', x[1].text)); fy = dict(re.findall(r'(\w+)\((\d+)\)', y[1].text))
        assert fx.keys() == fy.keys(), (x[1].text, y[1].text)
        p.items[i0+k] = ('i', Ins("s_waitcnt " + " ".join(f"{c}({min(int(fx[c]), int(fy[c]))})" for c in fx)))
    del p.items[i1:]

PROFILE = [False]
def mark(p, i):
    if PROFILE[0]: p(f"s_memtime s[{70+2*i}:{71+2*i}]")
```

```python
from asmlib import *
from layout import *

def prologue(p):
    p("s_load_dwordx16 s[4:19], s[0:1], 0")
    p("s_load_dwordx8 s[20:27], s[0:1], 64")

def wave_id(p, s, v=0, tmp=1):
    p(f"v_lshrrev_b32 v{tmp}, 6, v{v}")
    p(f"v_readfirstlane_b32 s{s}, v{tmp}")

LOG2E = 0x3fb8aa3b

def gemv_job(p, s_g, uid):
    srd(p, 32, S_WMOD, S_WMOD+1, 0, 576*3456*2)
    srd(p, 36, S_C, S_C+1, 0, 1152)
    srd(p, 40, S_WS, S_WS+1, MOD, MOD_SZ)
    p("v_lshrrev_b32 v2, 2, v0")
    p("v_and_b32 v3, 3, v0")
    p("v_lshlrev_b32 v4, 1, v2")
    for i in range(9):
        p.vmem(f"buffer_load_ushort v{10+i}, v4, s[36:39], 0 offen offset:{128*i}", 'c')
    p("s_movk_i32 s44, 6912")
    p("v_mul_lo_u32 v5, v2, s44")
    p("v_lshl_add_u32 v5, v3, 4, v5")
    p(f"s_lshl_b32 s45, s{s_g}, 6")
    for i in range(9):
        p.vmem(f"buffer_load_dwordx4 v[{20+4*i}:{23+4*i}], v5, s[32:35], s45 offen", f'w{i}')
        if i < 8: p(f"s_add_u32 s45, s45, {64*6912}")
    p.wait(vm='c')
    p(f"s_mov_b32 s46, {hex(LOG2E)}")
    for i in range(9): p(f"v_lshlrev_b32 v{10+i}, 16, v{10+i}")
    for i in range(9): p(f"v_mul_f32 v{60+i}, s46, v{10+i}")
    for i in range(9): p(f"v_exp_f32 v{60+i}, -v{60+i}")
    for i in range(9): p(f"v_add_f32 v{60+i}, 1.0, v{60+i}")
    for i in range(9): p(f"v_rcp_f32 v{60+i}, v{60+i}")
    for i in range(9): p(f"v_mul_f32 v{10+i}, v{10+i}, v{60+i}")
    for i in range(9): p(f"v_cvt_pk_bf16_f32 v{10+i}, v{10+i}, v{10+i}")
    for i in range(9): p(f"v_and_b32 v{10+i}, 0xffff0000, v{10+i}")
    for i in range(9):
        p.wait(vm=f'w{i}')
        for d in range(4):
            p(f"v_lshlrev_b32 v{60+2*d}, 16, v{20+4*i+d}")
            p(f"v_and_b32 v{61+2*d}, 0xffff0000, v{20+4*i+d}")
        for e in range(8):
            if i == 0: p(f"v_mul_f32 v{70+e}, v{60+e}, v10")
            else: p(f"v_fmac_f32 v{70+e}, v{60+e}, v{10+i}")
    for e in range(8): p(f"v_add_f32_dpp v{70+e}, v{70+e}, v{70+e} row_shr:4 row_mask:0xf bank_mask:0xf bound_ctrl:1")
    for e in range(8): p(f"v_add_f32_dpp v{70+e}, v{70+e}, v{70+e} row_shr:8 row_mask:0xf bank_mask:0xf bound_ctrl:1")
    p("v_lshrrev_b32 v6, 4, v0")
    p("v_lshlrev_b32 v6, 7, v6")
    p("v_lshl_add_u32 v6, v3, 5, v6")
    p("v_and_b32 v7, 15, v0")
    p("v_cmp_le_u32 vcc, 12, v7")
    p("s_and_saveexec_b64 s[48:49], vcc")
    p("ds_write_b128 v6, v[70:73]")
    p("ds_write_b128 v6, v[74:77] offset:16")
    p("s_mov_b64 exec, s[48:49]")
    p("s_waitcnt lgkmcnt(0)")
    p("s_barrier")
    p("v_cmp_gt_u32 vcc, 32, v0")
    p("s_and_saveexec_b64 s[48:49], vcc")
    p(f"s_cbranch_execz L_gemv_end{uid}")
    p("v_lshlrev_b32 v6, 2, v0")
    for i in range(16):
        p(f"ds_read_b32 v{20+i}, v6 offset:{128*i}")
        if i == 11: p("s_waitcnt lgkmcnt(4)")
    p("s_waitcnt lgkmcnt(0)")
    for i in range(8): p(f"v_add_f32 v{20+2*i}, v{20+2*i}, v{21+2*i}")
    for i in range(4): p(f"v_add_f32 v{20+4*i}, v{20+4*i}, v{22+4*i}")
    p("v_add_f32 v20, v20, v24\nv_add_f32 v28, v28, v32\nv_add_f32 v20, v20, v28")
    p("v_cvt_pk_bf16_f32 v20, v20, v20\nv_and_b32 v20, 0xffff0000, v20")
    p(f"s_sub_u32 s44, s{s_g}, 18\ns_cmp_lt_u32 s44, 18\ns_cselect_b32 s46, 1, 0")
    p(f"s_sub_u32 s44, s{s_g}, 72\ns_cmp_lt_u32 s44, 18\ns_cselect_b32 s46, 1, s46")
    p("s_cmp_eq_u32 s46, 0")
    p(f"s_cbranch_scc1 L_gemv_st{uid}")
    p("v_add_f32 v20, 1.0, v20\nv_cvt_pk_bf16_f32 v20, v20, v20\nv_and_b32 v20, 0xffff0000, v20")
    p.label(f"L_gemv_st{uid}")
    p(f"s_lshl_b32 s45, s{s_g}, 7")
    p("buffer_store_dword v20, v6, s[40:43], s45 offen")
    p(f"s_sub_u32 s44, s{s_g}, 54\ns_cmp_ge_u32 s44, 36\ns_cbranch_scc1 L_gemv_end{uid}")
    p(f"s_lshl_b32 s45, s44, 6\ns_add_u32 s46, s45, 1152\ns_sub_u32 s45, s45, 1152\ns_cmp_lt_u32 s44, 18\ns_cselect_b32 s45, s46, s45")
    srd(p, 40, S_WS, S_WS+1, MODB, MODB_SZ)
    p("v_lshlrev_b32 v6, 1, v0\nv_lshrrev_b32 v20, 16, v20")
    p("buffer_store_short v20, v6, s[40:43], s45 offen")
    p.label(f"L_gemv_end{uid}")
    p("s_endpgm")
    p.vm = []; p.lg = []

def ln_job(p, s_t, s_w, with_xf=True):
    srd(p, 32, S_X, S_X+1, 0, T*D*2)
    srd(p, 36, S_WS, S_WS+1, XN, XT_SZ)
    srd(p, 40, S_WS, S_WS+1, XF, XT_SZ)
    p("v_and_b32 v1, 63, v0")
    p("v_lshrrev_b32 v2, 3, v0")
    p("v_and_b32 v3, 7, v0")
    p("v_mul_u32_u24 v4, 1152, v2")
    p("v_lshl_add_u32 v4, v3, 4, v4")
    p(f"s_mul_i32 s44, s{s_t}, {32*1152}")
    for i in range(9):
        p.vmem(f"buffer_load_dwordx4 v[{12+4*i}:{15+4*i}], v4, s[32:35], s44 offen offset:{128*i}", f'x{i}')
    p("v_mul_u32_u24 v5, 528, v3")
    p("v_lshl_add_u32 v5, v2, 4, v5")
    p("v_lshrrev_b32 v6, 5, v1")
    p("v_mul_u32_u24 v6, 528, v6")
    p("v_and_b32 v7, 31, v1")
    p("v_lshl_add_u32 v6, v7, 4, v6")
    p(f"s_mul_i32 s45, s{s_w}, {9*1056}")
    p("v_add_u32 v6, s45, v6")
    p("v_lshlrev_b32 v7, 4, v1")
    p(f"s_mul_i32 s46, s{s_t}, 36864")
    p(f"s_mul_i32 s47, s{s_w}, 9216")
    p("s_add_u32 s46, s46, s47")
    p("s_mov_b32 s48, 0x3f803f80\ns_mov_b32 s49, 0x00003f80\ns_mov_b32 s50, 0x3f800000")
    p("v_mov_b32 v8, 0\nv_mov_b32 v9, 0")
    for i in range(9):
        p.wait(vm=f'x{i}')
        for d in range(4):
            p(f"v_dot2_f32_bf16 v{8+(d&1)}, v{12+4*i+d}, s48, v{8+(d&1)}")
        if with_xf:
            p.lds(f"ds_write_b128 v5, v[{12+4*i}:{15+4*i}] offset:{8*528*i}")
    p("v_add_f32 v8, v8, v9")
    def red8(r):
        p(f"v_add_f32_dpp v{r}, v{r}, v{r} quad_perm:[1,0,3,2] row_mask:0xf bank_mask:0xf")
        p(f"v_add_f32_dpp v{r}, v{r}, v{r} quad_perm:[2,3,0,1] row_mask:0xf bank_mask:0xf")
        p(f"v_add_f32_dpp v{r}, v{r}, v{r} row_half_mirror row_mask:0xf bank_mask:0xf")
    red8(8)
    p(f"v_mul_f32 v8, {f2h(-1/576)}, v8")
    if with_xf:
        p.wait(lg='all'); p("s_barrier")
        for i in range(9): p.lds(f"ds_read_b128 v[{124+4*i}:{127+4*i}], v6 offset:{1056*i}", f'r{i}')
    for i in range(36):
        p(f"v_dot2_f32_bf16 v{48+2*i}, v{12+i}, s49, v8")
        p(f"v_dot2_f32_bf16 v{49+2*i}, v{12+i}, s50, v8")
    if with_xf:
        p("s_mov_b32 s47, s46")
        for i in range(9):
            p.wait(lg=f'r{i}')
            p.vmem(f"buffer_store_dwordx4 v[{124+4*i}:{127+4*i}], v7, s[40:43], s47 offen offset:{1024*(i%4)}")
            if i % 4 == 3: p("s_add_u32 s47, s47, 4096")
    p("v_mul_f32 v9, v48, v48\nv_mul_f32 v10, v49, v49")
    for i in range(2, 72): p(f"v_fmac_f32 v{9+(i&1)}, v{48+i}, v{48+i}")
    p("v_add_f32 v9, v9, v10")
    red8(9)
    p(f"v_mov_b32 v10, {f2h(1e-5)}")
    p(f"v_fmac_f32 v10, {f2h(1/576)}, v9")
    p("v_rsq_f32 v10, v10")
    for i in range(36): p(f"v_pk_mul_f32 v[{48+2*i}:{49+2*i}], v[{48+2*i}:{49+2*i}], v[10:11] op_sel_hi:[1,0]")
    for i in range(36): p(f"v_cvt_pk_bf16_f32 v{12+i}, v{48+2*i}, v{49+2*i}")
    if with_xf: p("s_barrier")
    for i in range(9): p.lds(f"ds_write_b128 v5, v[{12+4*i}:{15+4*i}] offset:{8*528*i}")
    p.wait(lg='all'); p("s_barrier")
    for i in range(9): p.lds(f"ds_read_b128 v[{48+4*i}:{51+4*i}], v6 offset:{1056*i}", f'r{i}')
    for i in range(9):
        p.wait(lg=f'r{i}')
        p.vmem(f"buffer_store_dwordx4 v[{48+4*i}:{51+4*i}], v7, s[36:39], s46 offen offset:{1024*(i%4)}")
        if i % 4 == 3: p("s_add_u32 s46, s46, 4096")
    p("s_endpgm")
    p.vm = []; p.lg = []

def set_J(p, sJ, rows, stride):
    for j in range(8): p(f"s_mov_b32 s{sJ+j}, {rows[j]*stride}")

def gather_frags(p, n, src, sJ, vvoff, s_base, dbase, dst, vlane16, s_dst, ddst, vt=16, batch=3):
    done = 0
    while done < n:
        b = min(batch, n - done)
        for f in range(b):
            p(f"v_add_u32 v{vt+52+f}, s{s_base}, v{vvoff}")
            for j in range(8):
                hi = "_hi" if j & 1 else ""
                p.vmem(f"buffer_load_short_d16{hi} v{vt+8*f+j}, v{vt+52+f}, s[{src}:{src+3}], s{sJ+j} offen", f'g{f}')
            p(f"s_add_u32 s{s_base}, s{s_base}, {dbase}")
        for f in range(b):
            p.wait(vm=f'g{f}')
            for d in range(4): p(f"v_or_b32 v{vt+32+4*f+d}, v{vt+8*f+2*d}, v{vt+8*f+2*d+1}")
            p.vmem(f"buffer_store_dwordx4 v[{vt+32+4*f}:{vt+35+4*f}], v{vlane16}, s[{dst}:{dst+3}], s{s_dst} offen")
            p(f"s_add_u32 s{s_dst}, s{s_dst}, {ddst}")
        done += b

NAT = list(range(8))
PERM = [8*(j>>2)+(j&3) for j in range(8)]

def gen_k0():
    p = Prog()
    N_GEMV, N_LN, N_WQ, N_WO = 108, 64, 162, 54
    b_ln = N_GEMV; b_wq = b_ln + N_LN; b_wo = b_wq + N_WQ; end = b_wo + N_WO
    p(f"s_cmp_ge_u32 s2, {end}\ns_cbranch_scc1 L0_exit")
    prologue(p)
    wave_id(p, 3)
    p(f"s_cmp_ge_u32 s2, {b_wq}\ns_cbranch_scc1 L0_shuf")
    p(f"s_cmp_ge_u32 s2, {b_ln}\ns_cbranch_scc1 L0_ln")
    p("s_waitcnt lgkmcnt(0)")
    gemv_job(p, 2, "0")
    p.label("L0_ln")
    p(f"s_sub_u32 s28, s2, {b_ln}")
    p("s_waitcnt lgkmcnt(0)")
    srd(p, 52, S_WS, S_WS+1, FLAGS, FLAGS_SZ)
    p("v_lshlrev_b32 v1, 3, v0\nv_mov_b32 v2, 0\nv_mov_b32 v3, 0\ns_lshl_b32 s29, s28, 11\nbuffer_store_dwordx2 v[2:3], v1, s[52:55], s29 offen")
    ln_job(p, 28, 3, with_xf=False)
    p.label("L0_shuf")
    p("v_and_b32 v1, 63, v0\nv_lshlrev_b32 v2, 4, v1\nv_and_b32 v3, 31, v1\nv_lshrrev_b32 v4, 5, v1")
    p(f"s_cmp_ge_u32 s2, {b_wo}\ns_cbranch_scc1 L0_wo")
    p(f"s_sub_u32 s28, s2, {b_wq}\ns_mul_i32 s59, s28, 0x5556\ns_lshr_b32 s59, s59, 16\ns_mul_i32 s60, s59, 3\ns_sub_u32 s60, s28, s60\ns_mov_b32 s28, s59")
    p("s_lshl_b32 s60, s60, 2\ns_add_u32 s60, s60, s3\ns_mul_i32 s60, s60, 3")
    set_J(p, 48, NAT, 3456)
    p(f"v_mul_u32_u24 v5, {8*3456}, v4")
    p(f"s_mul_i32 s29, s60, {16*3456}")
    p("s_cmp_ge_u32 s28, 32\ns_cbranch_scc1 L0_wq_r")
    p("v_lshrrev_b32 v6, 4, v3\nv_mul_u32_u24 v6, 18, v6\nv_and_b32 v7, 15, v3\nv_add_u32 v6, v6, v7")
    p("s_mul_i32 s30, s28, 72\ns_add_u32 s29, s29, s30")
    p("s_lshr_b32 s30, s28, 2\ns_mul_i32 s30, s30, 147456\ns_and_b32 s31, s28, 3\ns_lshl_b32 s31, s31, 10\ns_add_u32 s30, s30, s31")
    p("s_movk_i32 s56, 4096\ns_branch L0_wq_go")
    p.label("L0_wq_r")
    p("s_cmp_ge_u32 s28, 36\ns_cbranch_scc1 L0_wq_v")
    p("v_lshrrev_b32 v6, 1, v3\nv_mul_u32_u24 v6, 18, v6\nv_and_b32 v7, 1, v3\nv_add3_u32 v6, v6, v7, 16")
    p("s_sub_u32 s31, s28, 32\ns_mul_i32 s30, s31, 576\ns_add_u32 s29, s29, s30")
    p(f"s_lshl_b32 s31, s31, 10\ns_add_u32 s30, s31, {8*147456}")
    p("s_movk_i32 s56, 4096\ns_branch L0_wq_go")
    p.label("L0_wq_v")
    p("v_mov_b32 v6, v3")
    p("s_sub_u32 s31, s28, 36\ns_lshl_b32 s30, s31, 6\ns_add_u32 s29, s29, s30\ns_add_u32 s29, s29, 2304")
    p("s_lshr_b32 s57, s31, 2\ns_and_b32 s58, s31, 3\ns_lshl_b32 s58, s58, 10")
    p(f"s_mul_i32 s30, s57, 147456\ns_add_u32 s30, s30, s58\ns_add_u32 s30, s30, {9*147456}")
    p("s_movk_i32 s56, 4096")
    p.label("L0_wq_go")
    p("s_mul_i32 s31, s60, s56\ns_add_u32 s30, s30, s31")
    p("v_lshl_add_u32 v5, v6, 1, v5")
    p("s_waitcnt lgkmcnt(0)")
    srd(p, 32, S_WQKV, S_WQKV+1, 0, 576*1728*2)
    srd(p, 36, S_WS, S_WS+1, WQ, WQ_SZ)
    gather_frags(p, 3, 32, 48, 5, 29, 16*3456, 36, 2, 30, "s56")
    p("s_endpgm"); p.vm = []
    p.label("L0_wo")
    p(f"s_sub_u32 s28, s2, {b_wo}\ns_mul_i32 s59, s28, 0x5556\ns_lshr_b32 s59, s59, 16\ns_mul_i32 s60, s59, 3\ns_sub_u32 s60, s28, s60\ns_mov_b32 s28, s59")
    p("s_lshl_b32 s60, s60, 2\ns_add_u32 s60, s60, s3")
    p("v_and_b32 v6, 0x13, v3\nv_and_b32 v7, 8, v3\nv_lshrrev_b32 v7, 1, v7\nv_or_b32 v6, v6, v7\nv_and_b32 v7, 4, v3\nv_lshlrev_b32 v7, 1, v7\nv_or_b32 v6, v6, v7")
    p("s_lshr_b32 s30, s28, 1\ns_mul_i32 s30, s30, 73728\ns_and_b32 s31, s28, 1\ns_lshl_b32 s31, s31, 10\ns_add_u32 s57, s30, s31")
    p("s_waitcnt lgkmcnt(0)")
    srd(p, 32, S_WO, S_WO+1, 0, 576*576*2)
    srd(p, 36, S_WS, S_WS+1, WOS, WOS_SZ)
    p("s_cmp_ge_u32 s60, 8\ns_cbranch_scc1 L0_wo_r")
    set_J(p, 48, PERM, 1152)
    p(f"v_mul_u32_u24 v5, {4*1152}, v4\nv_lshl_add_u32 v5, v6, 1, v5")
    p(f"s_mul_i32 s29, s60, {4*18*1152}\ns_lshl_b32 s30, s28, 6\ns_add_u32 s29, s29, s30")
    p("s_lshl_b32 s31, s60, 13\ns_add_u32 s30, s57, s31")
    gather_frags(p, 4, 32, 48, 5, 29, 18*1152, 36, 2, 30, 2048, batch=4)
    p("s_endpgm"); p.vm = []
    p.label("L0_wo_r")
    set_J(p, 48, [(j>>1)*18+(j&1) for j in range(8)], 1152)
    p("s_sub_u32 s60, s60, 8")
    p(f"v_mul_u32_u24 v5, {72*1152}, v4\nv_lshl_add_u32 v5, v6, 1, v5")
    p(f"s_mul_i32 s29, s60, {144*1152}\ns_lshl_b32 s30, s28, 6\ns_add_u32 s29, s29, s30\ns_add_u32 s29, s29, {16*1152}")
    p(f"s_lshl_b32 s31, s60, 11\ns_add_u32 s30, s57, s31\ns_add_u32 s30, s30, {32*2048}")
    gather_frags(p, 1, 32, 48, 5, 29, 0, 36, 2, 30, 0)
    code_prefetch(p, "0", "k1_kernel", "L1_exit", 60, 4, 4, 8, 28, 2)
    p.label("L0_exit")
    p("s_endpgm")
    return p.finalize(), dict(name="k0_kernel", grid=end, block=256, lds=72*528, vgpr=128, agpr=0)
```

```python
from asmlib import *
from layout import *
from k0 import prologue, wave_id
import math

def mfma32(d, a, b, c):
    return f"v_mfma_f32_32x32x16_bf16 {d}, {a}, {b}, {c}"

def kloop(p, uid, nt, swap, ACT, ACC, COEF, TMP, HB, v_lane16, v_wrd, v_crd, s_act, s_w, s_m0, srd_act, srd_w, modulate, pre_barrier=None, s_cnt=69, s_mask=68, s_tmp=67):
    CH = 6; NW = CH*nt//4
    def emit(x):
        if isinstance(x, tuple):
            if x[0] == 'vm': p.vmem(x[1], x[2])
            elif x[0] == 'lds': p.lds(x[1], x[2])
            else: p.wait(**x[1])
        else: p(x)
    def actreg(s): return ACT + 4*(s % 18)
    def loads(c):
        L = [f"s_mov_b32 m0, s{s_m0}"]
        for i in range(NW):
            if i == 4: L += [f"s_add_u32 m0, s{s_m0}, 4096", f"s_add_u32 s{s_tmp}, s{s_w}, 4096"]
            L.append(('vm', f"buffer_load_dwordx4 v{v_lane16}, s[{srd_w}:{srd_w+3}], s{s_w if i < 4 else s_tmp} offen offset:{1024*(i%4)} lds", f'W{c}'))
        L += [f"s_add_u32 s{s_w}, s{s_w}, {CH*nt*1024}", f"s_add_u32 s{s_m0}, s{s_m0}, {CH*nt*1024}"]
        for i in range(CH):
            if i == 4: L.append(f"s_add_u32 s{s_act}, s{s_act}, 4096")
            L.append(('vm', f"buffer_load_dwordx4 {vr(actreg(CH*c+i),4)}, v{v_lane16}, s[{srd_act}:{srd_act+3}], s{s_act} offen offset:{1024*(i%4)}", f'A{CH*c+i}'))
        L.append(f"s_add_u32 s{s_act}, s{s_act}, 2048")
        return L
    def rdWo(s, base):
        L = []
        for t in range(nt):
            off = ((s-base)*nt+t)*1024
            L.append(('lds', f"ds_read_b128 {ar(16*(s%3)+4*t,4)}, v{v_wrd + off//65536} offset:{off%65536}", f'w{s}'))
        return L
    def rdCo(s, base):
        return [('lds', f"ds_read_b128 {vr(COEF+16*(s%3)+4*q,4)}, v{v_crd} offset:{128*(s-base)+16*q}", f'c{s}') for q in range(4)]
    def mod_ops(s):
        c = COEF + 16*(s%3); x = actreg(s); hb = HB + 4*(s&1)
        L = []
        for d in range(4): L += [f"v_lshlrev_b32 v{TMP+2*d}, 16, v{x+d}", f"v_and_b32 v{TMP+2*d+1}, s{s_mask}, v{x+d}"]
        L += [f"v_fmac_f32 v{c+8+j}, v{TMP+j}, v{c+j}" for j in range(8)]
        L += [f"v_cvt_pk_bf16_f32 v{hb+d}, v{c+8+2*d}, v{c+8+2*d+1}" for d in range(4)]
        return L
    def hreg(s): return vr(HB + 4*(s&1), 4) if modulate else vr(actreg(s), 4)
    for x in loads(0): emit(x)
    p(f"s_mov_b32 s{s_mask}, 0xffff0000\ns_mov_b32 s{s_cnt}, 0")
    z = [f"v_mov_b32 v{ACC+i}, 0" for i in range(16*nt)]
    for x in loads(1):
        emit(x)
        if isinstance(x, tuple):
            for y in z[:6]: p(y)
            z = z[6:]
    for y in z: p(y)
    if pre_barrier: pre_barrier()
    mark(p, 0)
    p.wait(vm='W0', lg='all'); p("s_barrier")
    mark(p, 1)
    if modulate:
        for x in rdCo(0, 0) + rdWo(0, 0) + rdCo(1, 0): emit(x)
        p.wait(vm='A0', lg='c0')
        for x in rdWo(1, 0) + rdCo(2, 0): emit(x)
        for x in mod_ops(0): p(x)
    else:
        for x in rdWo(0, 0) + rdWo(1, 0): emit(x)
    def body(it):
        base = 18*it
        ldq = []
        for s in range(base, base+18):
            nx = s + 1
            if s % CH == 0: ldq = loads(s//CH + 2)
            p.wait(vm=f'A{nx}' if modulate else f'A{s}', lg=[f'w{s}', f'c{nx}'], force=True)
            fill = []
            if (s+2) % CH == 0: fill += [('wait', dict(vm=f'W{(s+2)//CH}', force=True)), "s_barrier"]
            if modulate:
                rd = rdWo(s+2, base) + rdCo(s+3, base); mo = mod_ops(nx)
                for k in range(4): fill += rd[2*k:2*k+2] + mo[5*k:5*k+5]
            else: fill += rdWo(s+2, base)
            nv = sum(isinstance(x, tuple) for x in ldq); left = CH - s % CH
            take = (nv + left - 1) // left
            vm = []
            while ldq and (take > 0 or (not any(isinstance(y, tuple) for y in ldq))):
                x = ldq.pop(0); vm.append(x)
                if isinstance(x, tuple): take -= 1
            groups, cur = [], []
            for x in vm:
                cur.append(x)
                if isinstance(x, tuple): groups.append(cur); cur = []
            if cur: groups[-1] += cur
            if s == base + 17:
                fill += [f"v_add_u32 v{v_wrd}, {18*nt*1024}, v{v_wrd}"] + ([f"v_add_u32 v{v_wrd+1}, {18*nt*1024}, v{v_wrd+1}", f"v_add_u32 v{v_crd}, {18*128}, v{v_crd}"] if modulate else [])
            per = (len(fill) + nt - 1) // nt
            for t in range(nt):
                acc = vr(ACC + 16*t, 16); w = ar(16*(s%3) + 4*t, 4)
                p(mfma32(acc, hreg(s), w, acc) if swap else mfma32(acc, w, hreg(s), acc))
                for x in fill[t*per:(t+1)*per]: emit(x)
                gi = [g for k, g in enumerate(groups) if (k*nt)//max(1, len(groups)) == t]
                for g in gi:
                    for x in g: emit(x)
    p(".p2align 3")
    p.label(f"L{uid}_loop")
    i0 = len(p.items); body(0); i1 = len(p.items); body(1); merge_loop(p, i0, i1)
    p(f"s_add_u32 s{s_cnt}, s{s_cnt}, 1\ns_cmp_lt_u32 s{s_cnt}, 2\ns_cbranch_scc1 L{uid}_loop")
    mark(p, 4)

def gen_k1():
    p = Prog()
    p("s_cmp_ge_u32 s2, 256\ns_cbranch_scc1 L1_exit")
    prologue(p)
    wave_id(p, 3)
    p("s_and_b32 s28, s2, 3\ns_lshl_b32 s28, s28, 2\ns_bfe_u32 s29, s2, 0x20003\ns_add_u32 s28, s28, s29")
    p("s_lshr_b32 s30, s2, 5\ns_cmp_eq_u32 s30, 7\ns_cbranch_scc1 L1_exit\ns_bfe_u32 s29, s2, 0x10002\ns_mul_i32 s29, s29, 7\ns_add_u32 s29, s29, s30")
    p("s_cmp_ge_u32 s29, 14\ns_cbranch_scc1 L1_exit")
    p("s_lshl_b32 s30, s28, 2\ns_add_u32 s30, s30, s3")
    p("v_and_b32 v1, 63, v0\nv_lshlrev_b32 v2, 4, v1")
    p("v_add_u32 v3, 5120, v2\nv_add_u32 v4, 0x10000, v3")
    p("v_lshrrev_b32 v6, 5, v1")
    CO = 0
    p("v_lshlrev_b32 v5, 6, v6")
    p("s_waitcnt lgkmcnt(0)")
    mark(p, 5)
    srd(p, 32, S_WS, S_WS+1, XN, XT_SZ)
    srd(p, 36, S_WS, S_WS+1, WQ, WQ_SZ)
    p("s_add_u32 s34, s30, 1\ns_mul_i32 s34, s34, 36864")
    srd(p, 40, S_WS, S_WS+1, MOD, MOD_SZ)
    srd(p, 44, S_WS, S_WS+1, QM, KV + KV_SZ - QM)
    p("v_lshlrev_b32 v7, 4, v0")
    p.vmem("buffer_load_dwordx4 v[8:11], v7, s[40:43], 0 offen offset:2304", 'M')
    p.vmem("buffer_load_dwordx4 v[12:15], v7, s[40:43], 0 offen", 'M')
    p("s_mul_i32 s48, s30, 36864")
    ACT, ACC, COEF, TMP, HB = 24, 96, 160, 208, 216
    def pre_barrier():
        p.wait(vm='M')
        p(f"v_lshrrev_b32 v16, 1, v0\nv_lshlrev_b32 v16, 6, v16\nv_and_b32 v17, 1, v0\nv_lshl_add_u32 v16, v17, 4, v16")
        p("v_cmp_gt_u32 vcc, 144, v0\ns_and_saveexec_b64 s[52:53], vcc")
        p.lds("ds_write_b128 v16, v[8:11]")
        p.lds("ds_write_b128 v16, v[12:15] offset:32")
        p("s_mov_b64 exec, s[52:53]")
    p("s_mul_i32 s49, s29, 147456\ns_add_u32 s38, s49, 147456\ns_mul_i32 s50, s3, 6144\ns_add_u32 s49, s49, s50\ns_add_u32 s50, s50, 5120")
    p("s_cmp_ge_u32 s29, 9\ns_cbranch_scc1 L1_v")
    vm0, lg0 = list(p.vm), list(p.lg)
    kloop(p, '1a', 4, False, ACT, ACC, COEF, TMP, HB, 2, 3, 5, 48, 49, 50, 32, 36, True, pre_barrier)
    qs = 18**-0.5 * math.log2(math.e)
    p("s_cmp_eq_u32 s29, 8\ns_cbranch_scc1 L1_rem")
    p("s_and_b32 s51, s29, 3\ns_lshl_b32 s51, s51, 3")
    p("s_cmp_lt_u32 s29, 4\ns_cbranch_scc0 L1_k")
    p(f"s_mov_b32 s52, {f2h(qs)}\ns_mov_b32 s58, 65536\ns_lshl_b32 s54, s30, 10\ns_branch L1_main")
    p.label("L1_k")
    p(f"s_mov_b32 s52, 1.0\ns_mov_b32 s58, {KVH}\ns_lshr_b32 s54, s30, 3\ns_mul_i32 s54, s54, {KVC}\ns_and_b32 s55, s30, 7\ns_lshl_b32 s55, s55, 10\ns_add_u32 s54, s54, s55\ns_add_u32 s54, s54, {KV-QM}")
    p.label("L1_main")
    p("s_mul_i32 s55, s51, s58\ns_add_u32 s54, s54, s55")
    p("s_nop 7")
    for hh in range(8):
        a = ACC + 8*hh
        for j in range(4): p(f"v_pk_mul_f32 {vr(a+2*j,2)}, {vr(a+2*j,2)}, s[52:53] op_sel_hi:[1,0]")
        for d in range(4): p(f"v_cvt_pk_bf16_f32 v{ACT+4*hh+d}, v{a+2*d}, v{a+2*d+1}")
        p(f"buffer_store_dwordx4 {vr(ACT+4*hh,4)}, v2, s[44:47], s54 offen")
        if hh < 7: p("s_add_u32 s54, s54, s58")
    p("s_endpgm")
    p.label("L1_rem")
    p("v_and_b32 v7, 31, v1\nv_lshlrev_b32 v7, 2, v7")
    p("v_lshl_add_u32 v8, v6, 14, v7")
    p(f"v_mul_u32_u24 v9, {2*KVH}, v6\nv_add_u32 v9, v9, v7")
    p(f"s_lshl_b32 s52, s30, 7\ns_add_u32 s52, s52, {QR-QM}")
    p(f"s_lshr_b32 s54, s30, 3\ns_mul_i32 s54, s54, {KVC}\ns_and_b32 s55, s30, 7\ns_lshl_b32 s55, s55, 7\ns_add_u32 s54, s54, s55\ns_add_u32 s54, s54, {KV-QM+8192}")
    p(f"s_mov_b32 s56, {f2h(qs)}")
    p("s_nop 7")
    for t in range(4):
        for i in range(4):
            for jj in range(2):
                a = ACC + 16*t + 4*i + 2*jj
                head = 16*(t&1) + 4*i + jj
                if t < 2: p(f"v_mul_f32 v{a}, s56, v{a}\nv_mul_f32 v{a+1}, s56, v{a+1}")
                p(f"v_cvt_pk_bf16_f32 v{a}, v{a}, v{a+1}")
                if t < 2:
                    p(f"s_add_u32 s57, s52, {head*8192}\nbuffer_store_dword v{a}, v8, s[44:47], s57 offen")
                else:
                    p(f"s_add_u32 s57, s54, {head*KVH}\nbuffer_store_dword v{a}, v9, s[44:47], s57 offen")
    p("s_endpgm")
    p.label("L1_v")
    p.vm, p.lg = list(vm0), list(lg0)
    p("s_sub_u32 s51, s29, 9")
    kloop(p, '1b', 4, True, ACT, ACC, COEF, TMP, HB, 2, 3, 5, 48, 49, 50, 32, 36, True, pre_barrier)
    p(f"s_lshr_b32 s54, s30, 3\ns_mul_i32 s54, s54, {KVC}\ns_and_b32 s55, s30, 7\ns_mul_i32 s55, s55, 1280\ns_add_u32 s54, s54, s55\ns_add_u32 s54, s54, {KV-QM+9216}")
    p("s_lshl_b32 s52, s51, 7")
    p("v_and_b32 v7, 31, v1\nv_add_u32 v7, s52, v7")
    p(f"s_mov_b32 s53, {KVH}")
    p("v_mov_b32 v20, 0x3f803f80\nv_mov_b32 v21, 0x3f803f80\nv_mov_b32 v22, 0x3f803f80\nv_mov_b32 v23, 0x3f803f80\nv_mov_b32 v16, 0\nv_mov_b32 v17, 0\nv_mov_b32 v18, 0\nv_mov_b32 v19, 0")
    for t in range(4):
        if t == 2: p("s_cmp_eq_u32 s51, 4\ns_cbranch_scc1 L1_exit")
        p(f"v_add_u32 v8, {32*t}, v7")
        p("v_mul_u32_u24 v9, 3641, v8\nv_lshrrev_b32 v9, 16, v9")
        p("v_mul_u32_u24 v10, 18, v9\nv_sub_u32 v10, v8, v10")
        p("v_mul_lo_u32 v11, v9, s53\nv_lshl_add_u32 v11, v10, 4, v11\nv_mul_u32_u24 v12, 320, v6\nv_add_u32 v11, v11, v12")
        for sg in range(2):
            a = ACC + 16*t + 8*sg; r = ACT + 8*t + 4*sg
            for d in range(4): p(f"v_cvt_pk_bf16_f32 v{r+d}, v{a+2*d}, v{a+2*d+1}")
            p(f"buffer_store_dwordx4 {vr(r,4)}, v11, s[44:47], s54 offen offset:{640*sg}")
        p("v_cmp_eq_u32 vcc, 17, v10\ns_and_saveexec_b64 s[56:57], vcc")
        p("buffer_store_dwordx4 v[20:23], v11, s[44:47], s54 offen offset:16")
        p("buffer_store_dwordx4 v[20:23], v11, s[44:47], s54 offen offset:656")
        p("buffer_store_dwordx4 v[16:19], v11, s[44:47], s54 offen offset:32")
        p("buffer_store_dwordx4 v[16:19], v11, s[44:47], s54 offen offset:672")
        p("s_mov_b64 exec, s[56:57]")
    p.label("L1_exit")
    p("s_endpgm")
    return p.finalize(), dict(name="k1_kernel", grid=256, block=256, lds=147456+5120, vgpr=224, agpr=48)
```

```python
from asmlib import *
from layout import *
from k0 import prologue, wave_id
from k1 import mfma32
from k4 import mfma16

def shadow_setup(p, RAW):
    pass

import os
def gen_k2():
    FL = os.environ.get('K2F', 'a')
    p = Prog()
    SP = 8*KVC
    vK, vR, vV, vK0, vR0, vV0 = 4, 5, 6, 7, 8, 9
    M0r, M1r = 10, 11
    Q0, Q1, QRr = 16, 20, 24
    KR = [26, 28]; KM = [32, 36]; V = [40, 48]
    P = 56; NEG = 72; S = [104, 136]; O0, O1 = 168, 184
    TMP = 200
    RAW, MRG, COF, GV, VOF, VOB, VAD, VCO, CPY, VCP, VPF = 208, 216, 220, 224, 228, 229, 230, 231, 232, 236, 237
    p("s_cmp_ge_u32 s2, 256\ns_cbranch_scc1 L2_exit")
    prologue(p)
    wave_id(p, 3)
    p("s_and_b32 s28, s2, 7\ns_lshl_b32 s28, s28, 2\ns_bfe_u32 s29, s2, 0x20003\ns_add_u32 s28, s28, s29")
    p("s_lshr_b32 s29, s2, 5\ns_lshl_b32 s29, s29, 3\ns_and_b32 s30, s3, 3\ns_lshl_b32 s30, s30, 1\ns_add_u32 s29, s29, s30")
    p("s_lshr_b32 s30, s3, 2")
    p("v_and_b32 v1, 63, v0\nv_lshlrev_b32 v2, 4, v1\nv_lshlrev_b32 v3, 2, v1")
    p(f"s_mul_i32 s48, s28, {KVH}\ns_add_u32 s48, s48, {KV}")
    p("s_waitcnt lgkmcnt(0)")
    p(f"s_add_u32 s40, s{S_WS}, s48\ns_addc_u32 s41, s{S_WS+1}, 0\ns_mov_b32 s42, {KVH}\ns_mov_b32 s43, 0x20000")
    p("s_lshl_b32 m0, s3, 10\ns_movk_i32 s25, 8192")
    def kvdma():
        p.vmem("buffer_load_dwordx4 v2, s[40:43], m0 offen lds", 'D')
        p("s_add_u32 m0, m0, s25")
    for n in range(3): kvdma()
    srd(p, 32, S_WS, S_WS+1, QM, QM_SZ)
    srd(p, 36, S_WS, S_WS+1, QR, QR_SZ)
    srd(p, 44, S_WS, S_WS+1, OF, XT_SZ)
    p("s_lshl_b32 s48, s28, 16\ns_lshl_b32 s50, s29, 10\ns_add_u32 s48, s48, s50")
    p.vmem(f"buffer_load_dwordx4 {vr(Q0,4)}, v2, s[32:35], s48 offen", 'Q')
    p.vmem(f"buffer_load_dwordx4 {vr(Q1,4)}, v2, s[32:35], s48 offen offset:1024", 'Q')
    p("s_lshl_b32 s48, s28, 13\ns_lshl_b32 s50, s29, 7\ns_add_u32 s48, s48, s50")
    p.vmem(f"buffer_load_dword v{QRr}, v3, s[36:39], s48 offen", 'Q')
    for n in range(2): kvdma()
    srd(p, 60, S_WS, S_WS+1, XF, EXT + EXT_SZ - XF)
    srd(p, 96, S_WS, S_WS+1, MODB, MODB_SZ)
    p("v_and_b32 v12, 15, v1\nv_lshrrev_b32 v13, 4, v1")
    p(f"v_mov_b32 v{VCO}, 0x40000000\nv_mov_b32 v{VCP}, 0x40000000")
    p(f"s_mov_b32 s6, {T*D*2}\ns_mov_b32 s7, 0x20000")
    p("s_and_b32 s52, s3, 3")
    p("s_cmp_ge_u32 s2, 144\ns_cbranch_scc1 L2_jb")
    p("s_and_b32 s53, s2, 1\ns_lshr_b32 s54, s2, 1\ns_lshl_b32 s54, s54, 2\ns_add_u32 s54, s54, s52")
    p(f"s_cmp_eq_u32 s53, 0\ns_cselect_b32 s64, s{S_WG}, s{S_WU}\ns_cselect_b32 s65, s{S_WG+1}, s{S_WU+1}\ns_mov_b32 s66, {576*4608*2}\ns_mov_b32 s67, 0x20000")
    for j in range(8): p(f"s_mov_b32 s{8+j}, {j*9216}")
    p(f"v_mul_u32_u24 v{VOF}, {8*9216}, v13\nv_lshl_add_u32 v{VOF}, v12, 1, v{VOF}\nv_mov_b32 v{VOB}, v{VOF}")
    p(f"s_mul_i32 s16, s30, {288*9216}\ns_lshl_b32 s55, s54, 5\ns_add_u32 s16, s16, s55\ns_mov_b32 s17, {32*9216}\ns_mov_b32 s18, {32*9216}")
    p(f"s_mul_i32 s19, s54, 36864\ns_mul_i32 s55, s53, 18432\ns_add_u32 s19, s19, s55\ns_mul_i32 s55, s30, 9216\ns_add_u32 s19, s19, s55\ns_add_u32 s19, s19, {W1-XF}")
    p("s_mul_i32 s20, s30, 576")
    p(f"s_lshl_b32 s21, s54, 10\ns_lshl_b32 s55, s53, 9\ns_add_u32 s21, s21, s55\ns_lshl_b32 s55, s30, 8\ns_add_u32 s21, s21, s55\ns_add_u32 s21, s21, {EXT-XF}")
    p(f"v_mul_u32_u24 v14, 1152, v12\nv_lshl_add_u32 v14, v13, 4, v14\nv_cmp_gt_u32 vcc, 2, v12\nv_cndmask_b32 v{VCO}, v{VCO}, v14, vcc")
    p(f"v_and_b32 v14, 31, v1\nv_mul_u32_u24 v{VPF}, 9216, v14\ns_add_u32 s23, s16, {2*32*9216}\ns_mov_b32 s24, {32*9216}")
    p("s_mov_b32 s31, 0\ns_branch L2_jdone")
    p.label("L2_jb")
    p("s_cmp_ge_u32 s2, 216\ns_cbranch_scc1 L2_jd")
    srd(p, 64, S_WD, S_WD+1, 0, 4608*576*2)
    p("s_sub_u32 s53, s2, 144\ns_lshl_b32 s53, s53, 1\ns_add_u32 s53, s53, s30")
    p("s_mul_i32 s54, s53, 7282\ns_lshr_b32 s54, s54, 16\ns_mul_i32 s55, s54, 9\ns_sub_u32 s55, s53, s55")
    p("s_lshl_b32 s56, s55, 5\ns_add_u32 s57, s56, 16\ns_cmp_ge_u32 s55, 4\ns_cselect_b32 s56, s57, s56\ns_cmp_eq_u32 s55, 8\ns_cselect_b32 s56, 128, s56")
    p(f"s_cselect_b32 s57, 9, 1\ns_mul_i32 s57, s57, {16*1152}")
    p("s_mul_i32 s54, s54, 288\ns_add_u32 s54, s54, s56\ns_mul_i32 s16, s54, 1152\ns_mul_i32 s55, s52, 288\ns_add_u32 s16, s16, s55")
    for j in range(4): p(f"s_mov_b32 s{8+j}, {j*1152}\ns_add_u32 s{12+j}, s57, {j*1152}")
    p(f"v_mul_u32_u24 v14, {4*1152}, v13\nv_lshl_add_u32 v{VOB}, v12, 1, v14")
    p(f"v_lshrrev_b32 v15, 2, v12\nv_lshlrev_b32 v15, 3, v15\nv_and_b32 v12, 3, v12\nv_add_u32 v15, v15, v12\nv_lshl_add_u32 v{VOF}, v15, 1, v14")
    p("s_mov_b32 s17, 8\ns_mov_b32 s18, 56")
    p(f"s_mul_i32 s19, s52, {144*9216}\ns_mul_i32 s55, s53, 9216\ns_add_u32 s19, s19, s55\ns_add_u32 s19, s19, {W2-XF}")
    p(f"v_and_b32 v14, 15, v1\nv_mul_u32_u24 v{VPF}, 1152, v14\nv_bfe_u32 v14, v1, 4, 1\nv_mul_lo_u32 v14, v14, s57\nv_add_u32 v{VPF}, v{VPF}, v14\nv_lshrrev_b32 v14, 5, v1\nv_lshl_add_u32 v{VPF}, v14, 7, v{VPF}\ns_add_u32 s23, s16, 64\ns_mov_b32 s24, 0x40000000")
    p("s_mov_b32 s20, 0\ns_mov_b32 s21, 0\ns_mov_b32 s31, 1\ns_branch L2_jdone")
    p.label("L2_jd")
    srd(p, 64, S_X, S_X+1, 0, 0)
    for j in range(8): p(f"s_mov_b32 s{8+j}, 0")
    p("s_sub_u32 s53, s2, 216\ns_lshl_b32 s53, s53, 1\ns_add_u32 s53, s53, s30")
    p(f"v_and_b32 v12, 31, v1\nv_mul_u32_u24 v12, 1152, v12\nv_lshrrev_b32 v13, 5, v1\nv_lshl_add_u32 v{VCP}, v13, 4, v12\nv_mov_b32 v{VOF}, 0\nv_mov_b32 v{VOB}, 0")
    p("s_mul_i32 s16, s53, 36864\ns_mul_i32 s55, s52, 288\ns_add_u32 s16, s16, s55\ns_mov_b32 s17, 32\ns_mov_b32 s18, 32")
    p("s_mul_i32 s19, s53, 36864\ns_mul_i32 s55, s52, 9216\ns_add_u32 s19, s19, s55")
    p(f"v_mov_b32 v{VPF}, 0\ns_mov_b32 s23, 0\ns_mov_b32 s24, 0")
    p("s_mov_b32 s20, 0\ns_mov_b32 s21, 0\ns_mov_b32 s31, 2\ns_cmp_ge_u32 s2, 248\ns_cselect_b32 s19, 0x40000000, s19\ns_cselect_b32 s6, 0, s6")
    p.label("L2_jdone")
    def bg_issue_ops():
        L = [[f"v_add_u32 v{VAD}, s16, v{VOF}", f"buffer_load_short_d16 v{RAW}, v{VAD}, s[64:67], s8 offen"]]
        for j in range(1, 8):
            L.append([f"buffer_load_short_d16{'_hi' if j&1 else ''} v{RAW+j}, v{VAD}, s[64:67], s{8+j} offen"])
        L.append([f"buffer_load_dwordx4 {vr(COF,4)}, v{VCO}, s[96:99], s20 offen", "s_add_u32 s20, s20, 64"])
        L.append([f"buffer_load_dwordx4 {vr(CPY,4)}, v{VCP}, s[4:7], s16 offen", "s_add_u32 s16, s16, s17", "s_mov_b32 s22, s17", "s_mov_b32 s17, s18", "s_mov_b32 s18, s22"])
        return L
    def bg_issue():
        for g in bg_issue_ops():
            for x in g: p(x)
    def bg_finish():
        for d in range(4): p(f"v_or3_b32 v{MRG+d}, v{RAW+2*d}, v{RAW+2*d+1}, v{CPY+d}")
        p(f"buffer_store_dwordx4 {vr(MRG,4)}, v2, s[60:63], s19 offen sc1")
        p("s_add_u32 s19, s19, 1024")
        p(mfma16(vr(GV,4), vr(COF,4), vr(MRG,4), vr(GV,4)))
    bg_issue()
    for i in range(4): p(f"v_mov_b32 v{GV+i}, 0")
    p(f"s_lshl_b32 s50, s30, 12\nv_add_u32 v{vK0}, s50, v2")
    p(f"v_and_b32 v12, 31, v1\nv_lshlrev_b32 v13, 2, v12\ns_lshl_b32 s50, s30, 9\ns_add_u32 s50, s50, 8192\nv_add_u32 v{vR0}, s50, v13")
    p("v_cmp_eq_u32 vcc, 22, v12\nv_min_u32 v12, 19, v12\nv_cndmask_b32 v12, v12, 18, vcc".replace("v_cndmask_b32 v12, v12, 18, vcc", "v_mov_b32 v14, 18\nv_cndmask_b32 v12, v12, v14, vcc"))
    p(f"v_lshlrev_b32 v12, 4, v12\nv_lshrrev_b32 v14, 5, v1\nv_mul_u32_u24 v14, 320, v14\nv_add_u32 v12, v12, v14")
    p(f"s_mul_i32 s50, s30, {8*640}\ns_add_u32 s50, s50, 9216\nv_add_u32 v{vV0}, s50, v12")
    p(f"v_mov_b32 v{QRr+1}, 0\nv_mov_b32 v{KR[0]+1}, 0\nv_mov_b32 v{KR[1]+1}, 0")
    p(f"v_mov_b32 v14, {SP}\nv_mov_b32 v15, 0")
    p("ds_write_b32 v14, v15")
    p("s_mov_b32 s51, 0")
    def zero_state():
        for i in range(32): p(f"v_mov_b32 v{O0+i}, 0")
        for i in range(4): p(f"v_mov_b32 v{P+12+i}, 0\nv_mov_b32 v{V[1]+4+i}, 0")
        p(f"v_mov_b32 v{vK}, v{vK0}\nv_mov_b32 v{vR}, v{vR0}\nv_mov_b32 v{vV}, v{vV0}")
    zero_state()
    mark(p, 0)
    p("s_waitcnt vmcnt(12)")
    p.vm = []
    p("s_waitcnt lgkmcnt(0)\ns_barrier")
    mark(p, 1)
    def mf2b(d, kr, c): return f"v_mfma_f32_32x32x4_2b_bf16 {vr(d,32)}, {vr(kr,2)}, {vr(QRr,2)}, {c}"
    def qk(d, km, q): return mfma32(vr(d,16), vr(km,4), vr(q,4), vr(d,16))
    def rowmax(dst, s, first):
        if first:
            p(f"v_max3_f32 v{dst}, v{s}, v{s+1}, v{s+2}"); rest = list(range(3, 16))
            p(f"v_max_f32 v{dst}, v{dst}, v{s+15}"); rest = rest[:-1]
        else: rest = list(range(16))
        for i in range(0, len(rest), 2): p(f"v_max3_f32 v{dst}, v{dst}, v{s+rest[i]}, v{s+rest[i+1]}")
    def halfmax(r):
        p(f"v_mov_b32 v{TMP}, v{r}\nv_permlane32_swap_b32 v{TMP}, v{r}\nv_max_f32 v{r}, v{r}, v{TMP}")
    def rdK(n):
        b = n & 1; c = KVC if n >= 4 else 0; j = n & 3
        p(f"ds_read_b32 v{KR[b]}, v{vR} offset:{c+128*j}")
        p(f"ds_read_b128 {vr(KM[b],4)}, v{vK} offset:{c+1024*j}")
    def rdV(n):
        b = n & 1; c = KVC if n >= 4 else 0; j = n & 3
        p(f"ds_read_b128 {vr(V[b],4)}, v{vV} offset:{c+1280*j}")
        p(f"ds_read_b128 {vr(V[b]+4,4)}, v{vV} offset:{c+1280*j+640}")
    p(f"ds_read_b128 {vr(KM[1],4)}, v2\nds_read_b32 v{KR[1]}, v13 offset:8192\ns_waitcnt lgkmcnt(0)")
    p(mf2b(S[0], KR[1], "0")); p(qk(S[0], KM[1], Q0)); p(qk(S[0]+16, KM[1], Q1))
    rowmax(M0r, S[0], True); rowmax(M1r, S[0]+16, True)
    halfmax(M0r); halfmax(M1r)
    p.label("L2_start")
    rdK(0); rdK(1); rdV(0)
    for i in range(16): p(f"v_sub_f32 v{NEG+i}, 0, v{M0r}\nv_sub_f32 v{NEG+16+i}, 0, v{M1r}")
    p("s_waitcnt lgkmcnt(0)")
    p(mf2b(S[0], KR[0], vr(NEG,32))); p(qk(S[0], KM[0], Q0)); p(qk(S[0]+16, KM[0], Q1))
    mark(p, 2)
    p("s_mov_b32 s52, 0\ns_setprio 2\ns_nop 8")
    p(".p2align 3")
    p.label("L2_loop")
    def pv(o, v, pp): return mfma32(vr(o,16), vr(v,4), vr(pp,4), vr(o,16))
    bgq = []
    def pf_ops():
        return [f"buffer_load_dword v{VPF+1}, v{VPF}, s[64:67], s23 offen", "s_add_u32 s23, s23, s24"]
    def kv_ops(): return ["buffer_load_dwordx4 v2, s[40:43], m0 offen lds", "s_add_u32 m0, m0, s25"]
    bgq[:] = [kv_ops(), kv_ops(), kv_ops()] + ([pf_ops()] if 'f' in FL else [])
    for j in range(4):
        b = j & 1; sc = S[b]; sn = S[b^1]
        def half(k):
            for e in range(4): p(f"v_exp_f32 v{sc+4*k+e}, v{sc+4*k+e}")
            for c in range(2): p(f"v_cvt_pk_bf16_f32 v{P+2*k+c}, v{sc+4*k+2*c}, v{sc+4*k+2*c+1}")
        def bg():
            if bgq:
                for x in bgq.pop(0): p(x)
        c4 = lambda n: KVC if n >= 4 else 0
        p("s_waitcnt lgkmcnt(0)")
        p(mf2b(sn, KR[b^1], vr(NEG,32)))
        half(0); half(1)
        if j == 2:
            p(f"s_waitcnt vmcnt({1 if 'f' in FL else 0})\ns_barrier\ns_setprio 3")
            if 's' not in FL:
                bg_finish()
                p(f"s_cmp_lg_u32 s52, 7\ns_cbranch_scc1 L2_nosw\nv_mov_b32 v{VOF}, v{VOB}")
                p.label("L2_nosw")
                bgq[:] = bg_issue_ops()
        else:
            p(f"s_setprio {(1,0,3,2)[j]}")
            bg()
        def pt(m, extra):
            if 'a' in FL: p(m)
            bg()
            if extra: p(extra)
            if 'a' not in FL: p(m)
        p(pv(O1, V[b^1]+4, P+12))
        half(2)
        pt(pv(O0, V[b], P), f"ds_read_b128 {vr(V[b^1],4)}, v{vV} offset:{c4(j+1)+1280*((j+1)&3)}")
        half(3)
        pt(qk(sn, KM[b^1], Q0), f"ds_read_b128 {vr(V[b^1]+4,4)}, v{vV} offset:{c4(j+1)+1280*((j+1)&3)+640}")
        half(4)
        pt(pv(O0, V[b]+4, P+4), f"ds_read_b32 v{KR[b]}, v{vR} offset:{c4(j+2)+128*((j+2)&3)}")
        half(5)
        pt(qk(sn+16, KM[b^1], Q1), f"ds_read_b128 {vr(KM[b],4)}, v{vK} offset:{c4(j+2)+1024*((j+2)&3)}")
        half(6)
        if j == 3:
            p(f"v_add_u32 v{vK}, {KVC}, v{vK}\nv_add_u32 v{vR}, {KVC}, v{vR}\nv_add_u32 v{vV}, {KVC}, v{vV}")
            p("s_add_u32 s52, s52, 1\ns_cmp_lt_u32 s52, 8")
            p(pv(O1, V[b], P+8))
        else: pt(pv(O1, V[b], P+8), None)
        half(7)
        if j == 3: assert not bgq
        if j == -1: pass
        if j == 0: pass
        if j == 3: pass
        if j == 0 or j == 1: pass
    assert not bgq
    p("s_cbranch_scc1 L2_loop")
    mark(p, 3)
    p(pv(O1, V[1]+4, P+12))
    p.vm = []
    p("s_waitcnt vmcnt(0)")
    bg_finish()
    p("s_cmp_lg_u32 s31, 0\ns_cbranch_scc1 L2_noext")
    p("s_nop 7")
    p(f"v_cvt_pk_bf16_f32 v{RAW}, v{GV}, v{GV+1}")
    p(f"v_lshlrev_b32 v{RAW+1}, 16, v{RAW}\nv_and_b32 v{RAW+2}, 0xffff0000, v{RAW}")
    p(f"v_sub_f32 v{GV}, v{GV}, v{RAW+1}\nv_sub_f32 v{GV+1}, v{GV+1}, v{RAW+2}")
    p(f"v_cvt_pk_bf16_f32 v{MRG}, v{RAW+1}, v{GV}\nv_mov_b32 v{MRG+1}, v{RAW}\nv_cvt_pk_bf16_f32 v{MRG+2}, v{GV+1}, v{RAW+2}\nv_mov_b32 v{MRG+3}, 0")
    p("s_mov_b64 s[56:57], exec\ns_mov_b64 exec, 0xffff")
    p(f"buffer_store_dwordx4 {vr(MRG,4)}, v2, s[60:63], s21 offen")
    p("s_mov_b64 exec, s[56:57]")
    p.label("L2_noext")
    p("s_mov_b32 s31, 3\ns_mov_b32 s19, 0x40000000\ns_mov_b32 s66, 0\ns_mov_b32 s6, 0")
    p("s_waitcnt lgkmcnt(0)\ns_nop 4")
    p(f"v_add_f32 v{TMP}, abs(v{O0}), abs(v{O0+1})")
    for i in range(2, 10): p(f"v_add_f32 v{TMP}, v{TMP}, abs(v{O0+i})")
    for i in range(10): p(f"v_add_f32 v{TMP}, v{TMP}, abs(v{O1+i})")
    p(f"v_add_f32 v{TMP+1}, abs(v{O0+10}), abs(v{O1+10})")
    p(f"s_mov_b32 s53, {f2h(2.0**126)}\ns_mov_b32 s54, {f2h(2.0**64)}")
    p(f"v_cmp_nge_f32 vcc, s53, v{TMP}")
    p(f"v_cmp_nge_f32 s[56:57], s54, v{TMP+1}")
    p("s_or_b64 vcc, vcc, s[56:57]")
    p(f"v_mov_b32 v14, {SP}\nv_mov_b32 v15, 1")
    p("s_cbranch_vccz L2_good")
    p("ds_write_b32 v14, v15")
    p.label("L2_good")
    p("s_waitcnt lgkmcnt(0)\ns_barrier")
    p("ds_read_b32 v15, v14\ns_waitcnt lgkmcnt(0)\nv_readfirstlane_b32 s53, v15")
    p("s_andn2_b32 s53, s53, s51\ns_cmp_lg_u32 s53, 0\ns_cbranch_scc1 L2_slow")
    mark(p, 4)
    p("s_cmp_eq_u32 s30, 0\ns_cbranch_scc1 L2_noswap")
    for i in range(12): p(f"v_swap_b32 v{O0+i}, v{O1+i}")
    p.label("L2_noswap")
    p("s_mul_i32 s53, s3, 3072\nv_add_u32 v14, s53, v2\ns_xor_b32 s54, s3, 4\ns_mul_i32 s54, s54, 3072\nv_add_u32 v15, s54, v2")
    for i in range(3): p(f"ds_write_b128 v14, {vr(O1+4*i,4)} offset:{1024*i}")
    p("s_waitcnt lgkmcnt(0)\ns_barrier")
    for i in range(3): p(f"ds_read_b128 {vr(O1+4*i,4)}, v15 offset:{1024*i}")
    p("s_add_u32 s53, s29, s30\ns_mul_i32 s53, s53, 36864\ns_lshl_b32 s54, s28, 10\ns_add_u32 s54, s54, s53")
    p("s_lshr_b32 s55, s28, 3\ns_add_u32 s55, s55, 32\ns_lshl_b32 s55, s55, 10\ns_add_u32 s55, s55, s53")
    p("s_bfe_u32 s56, s28, 0x10002\ns_lshl_b32 s56, s56, 9\ns_add_u32 s55, s55, s56\ns_and_b32 s56, s28, 3\ns_lshl_b32 s56, s56, 2\ns_add_u32 s55, s55, s56")
    p("s_waitcnt lgkmcnt(0)")
    for i in range(11): p(f"v_add_f32 v{O0+i}, v{O0+i}, v{O1+i}")
    p(f"v_rcp_f32 v{O0+10}, v{O0+10}")
    for i in range(10): p(f"v_mul_f32 v{O0+i}, v{O0+i}, v{O0+10}")
    for d in range(5): p(f"v_cvt_pk_bf16_f32 v{P+d}, v{O0+2*d}, v{O0+2*d+1}")
    p(f"buffer_store_dwordx4 {vr(P,4)}, v2, s[44:47], s54 offen")
    p("s_mov_b32 exec_hi, 0")
    p(f"buffer_store_dword v{P+4}, v2, s[44:47], s55 offen")
    p("s_endpgm")
    p.label("L2_slow")
    p(f"v_mov_b32 v{vK}, v{vK0}\nv_mov_b32 v{vR}, v{vR0}\nv_mov_b32 v{M0r}, 0xff800000\nv_mov_b32 v{M1r}, 0xff800000\ns_mov_b32 s52, 0")
    p.label("L2_slow_loop")
    for j in range(4):
        p(f"ds_read_b32 v{KR[0]}, v{vR} offset:{128*j}\nds_read_b128 {vr(KM[0],4)}, v{vK} offset:{1024*j}\ns_waitcnt lgkmcnt(0)")
        p(mf2b(S[0], KR[0], "0")); p(qk(S[0], KM[0], Q0)); p(qk(S[0]+16, KM[0], Q1))
        rowmax(M0r, S[0], False); rowmax(M1r, S[0]+16, False)
    p(f"v_add_u32 v{vK}, {KVC}, v{vK}\nv_add_u32 v{vR}, {KVC}, v{vR}")
    p("s_add_u32 s52, s52, 1\ns_cmp_lt_u32 s52, 8\ns_cbranch_scc1 L2_slow_loop")
    halfmax(M0r); halfmax(M1r)
    p(f"s_lshl_b32 s53, s3, 9\ns_add_u32 s53, s53, {SP+64}\nv_lshlrev_b32 v14, 3, v1\nv_add_u32 v15, s53, v14")
    p(f"ds_write_b64 v15, v[{M0r}:{M1r}]")
    p(f"s_xor_b32 s53, s3, 4\ns_lshl_b32 s53, s53, 9\ns_add_u32 s53, s53, {SP+64}\nv_add_u32 v15, s53, v14")
    p(f"s_waitcnt lgkmcnt(0)\ns_barrier\nds_read_b64 v[{TMP}:{TMP+1}], v15\ns_waitcnt lgkmcnt(0)")
    p(f"v_max_f32 v{M0r}, v{M0r}, v{TMP}\nv_max_f32 v{M1r}, v{M1r}, v{TMP+1}")
    zero_state()
    p("s_mov_b32 s51, 1\ns_mov_b32 s25, 0\ns_mov_b32 m0, 0x28000\ns_branch L2_start")
    p.label("L2_exit")
    p("s_endpgm")
    return p.finalize(), dict(name="k2_kernel", grid=256, block=512, lds=163840, vgpr=240, agpr=0)
```

```python
from asmlib import *
from layout import *
from k0 import prologue, wave_id
from k1 import mfma32

def k3_body(p, done_label):
    ACT, ACC, XR, GA, TMP, CB = 16, 160, 192, 208, 16, 48
    p("s_lshl_b32 s30, s28, 2\ns_add_u32 s30, s30, s3")
    p("v_and_b32 v1, 63, v0\nv_lshlrev_b32 v2, 4, v1\nv_add_u32 v3, 1024, v2")
    p("v_and_b32 v8, 15, v1\nv_lshlrev_b32 v8, 4, v8\nv_bfe_u32 v9, v1, 4, 1\nv_mul_u32_u24 v9, 4608, v9\nv_add_u32 v8, v8, v9")
    p("s_mul_i32 s48, s30, 36864")
    p("s_mul_i32 s49, s29, 73728\ns_mul_i32 s50, s3, 3072\ns_add_u32 s49, s49, s50\ns_add_u32 s50, s50, 1024")
    p("s_lshl_b32 s51, s29, 12\ns_add_u32 s51, s51, s48")
    p(f"s_lshl_b32 s52, s29, 8\ns_add_u32 s52, s52, {2*2304}")
    p("s_waitcnt lgkmcnt(0)")
    mark(p, 5)
    srd(p, 36, S_WS, S_WS+1, WOS, WOS_SZ)
    srd(p, 32, S_WS, S_WS+1, OF, XT_SZ)
    srd(p, 40, S_WS, S_WS+1, MOD, MOD_SZ)
    srd(p, 44, S_WS, S_WS+1, XF, XT_SZ)
    def emit(x):
        if isinstance(x, tuple):
            if x[0] == 'vm': p.vmem(x[1], x[2])
            elif x[0] == 'lds': p.lds(x[1], x[2])
        else: p(x)
    vmq = [('vm', f"buffer_load_dwordx4 {vr(GA,4)}, v8, s[40:43], s52 offen", 'G')]
    for c in range(6):
        vmq += [f"s_add_u32 m0, s50, {c*12288}", f"s_add_u32 s53, s49, {c*12288}"]
        vmq += [('vm', f"buffer_load_dwordx4 v2, s[36:39], s53 offen offset:{1024*i} lds", f'W{c}') for i in range(3)]
        for s in range(6*c, 6*c+6):
            vmq.append(('vm', f"buffer_load_dwordx4 {vr(ACT+4*s,4)}, v2, s[32:35], s48 offen offset:{1024*(s%4)}", f'A{s}'))
            if s % 4 == 3: vmq.append("s_add_u32 s48, s48, 4096")
    vmq += [('vm', f"buffer_load_dwordx4 {vr(XR+4*i,4)}, v2, s[44:47], s51 offen offset:{1024*i}", 'X') for i in range(4)]
    def vm_next(n=1):
        while n > 0 and vmq:
            x = vmq.pop(0); emit(x)
            if isinstance(x, tuple): n -= 1
    vm_next(6)
    srd(p, 56, S_WS, S_WS+1, X2, XT_SZ)
    vm_next(2)
    srd(p, 60, S_WS, S_WS+1, STATS, STATS_SZ)
    vm_next(2)
    srd(p, 8, S_WS, S_WS+1, YF, XT_SZ)
    vm_next(2)
    p("v_lshrrev_b32 v6, 5, v1\nv_lshlrev_b32 v7, 5, v6")
    p("v_bfe_u32 v14, v1, 4, 1\nv_mul_u32_u24 v14, 18432, v14\nv_lshl_add_u32 v14, v6, 8, v14\nv_and_b32 v15, 15, v1\nv_lshl_add_u32 v14, v15, 4, v14")
    vm_next(2)
    p("s_mul_i32 s16, s30, 36864\ns_lshl_b32 s17, s29, 11\ns_add_u32 s16, s16, s17\ns_mov_b32 s13, 0xffff0000")
    p("s_lshl_b32 s18, s29, 14\ns_lshl_b32 s54, s30, 8\ns_add_u32 s18, s18, s54\nv_lshlrev_b32 v13, 3, v1")
    vm_next(14)
    p.wait(vm='G')
    p.lds(f"ds_write_b128 v2, {vr(GA,4)}")
    def rdW(s): return [('lds', f"ds_read_b128 {ar(8*(s%3)+4*t,4)}, v{3 + ((s*2+t)*1024)//65536} offset:{((s*2+t)*1024)%65536}", f'w{s}') for t in range(2)]
    p("v_add_u32 v4, 0x10000, v3")
    mark(p, 0)
    p.wait(vm='W0', lg='all'); p("s_barrier")
    mark(p, 1)
    for x in rdW(0) + rdW(1): emit(x)
    for s in range(36):
        p.wait(vm=f'A{s}', lg=f'w{s}')
        for t in range(2):
            acc = vr(ACC+16*t, 16)
            p(mfma32(acc, ar(8*(s%3)+4*t, 4), vr(ACT+4*s, 4), acc if s else "0"))
            if t == 0:
                if s + 2 < 36:
                    if (s+2) % 6 == 0: p.wait(vm=f'W{(s+2)//6}'); p("s_barrier")
                    for x in rdW(s+2): emit(x)
                vm_next()
            elif s & 1: vm_next()
        if s == 30:
            for i in range(8): p.lds(f"ds_read_b128 {vr(GA+4*i,4)}, v7 offset:{64*(i>>1)+16*(i&1)}", 'g')
    assert not vmq
    mark(p, 4)
    for i in range(8): p.lds(f"ds_read_b128 {vr(CB+4*i,4)}, v7 offset:{256+64*(i>>1)+16*(i&1)}", 'c')
    p.wait(vm='X')
    for i in range(16):
        p(f"v_lshlrev_b32 v{TMP+2*i}, 16, v{XR+i}\nv_and_b32 v{TMP+2*i+1}, s13, v{XR+i}")
    p.wait(lg='g')
    for i in range(16): p(f"v_pk_fma_f32 {vr(TMP+2*i,2)}, {vr(GA+2*i,2)}, {vr(ACC+2*i,2)}, {vr(TMP+2*i,2)}")
    p.wait(lg='c')
    for i in range(16): p(f"v_pk_mul_f32 {vr(CB+2*i,2)}, {vr(CB+2*i,2)}, {vr(TMP+2*i,2)}")
    for i in range(16):
        p(f"v_cvt_pk_bf16_f32 v{GA+i}, v{CB+2*i}, v{CB+2*i+1}")
        if i % 4 == 3: p(f"buffer_store_dwordx4 {vr(GA+i-3,4)}, v14, s[8:11], s16 offen offset:{128*(i-3)} sc1")
    p(f"v_pk_add_f32 v[8:9], {vr(TMP,2)}, {vr(TMP+2,2)}\nv_pk_add_f32 v[10:11], {vr(TMP+4,2)}, {vr(TMP+6,2)}")
    for i in range(4, 16): p(f"v_pk_add_f32 v[{8+2*(i&1)}:{9+2*(i&1)}], v[{8+2*(i&1)}:{9+2*(i&1)}], {vr(TMP+2*i,2)}")
    p("v_pk_add_f32 v[8:9], v[8:9], v[10:11]\nv_add_f32 v8, v8, v9")
    def xsum(r):
        p(f"v_mov_b32 v10, v{r}\nv_permlane32_swap_b32 v10, v{r}\nv_add_f32 v{r}, v{r}, v10")
    xsum(8)
    p(f"v_mul_f32 v8, {f2h(1/64)}, v8")
    for i in range(16): p(f"v_pk_add_f32 {vr(CB+2*i,2)}, {vr(TMP+2*i,2)}, v[8:9] op_sel_hi:[1,0] neg_lo:[0,1] neg_hi:[0,1]")
    p(f"v_pk_mul_f32 v[10:11], {vr(CB,2)}, {vr(CB,2)}\nv_pk_mul_f32 v[4:5], {vr(CB+2,2)}, {vr(CB+2,2)}")
    for i in range(2, 16):
        r = "v[10:11]" if i % 2 == 0 else "v[4:5]"
        p(f"v_pk_fma_f32 {r}, {vr(CB+2*i,2)}, {vr(CB+2*i,2)}, {r}")
    p("v_pk_add_f32 v[4:5], v[4:5], v[10:11]\nv_add_f32 v9, v4, v5"); xsum(9)
    p("s_mov_b32 exec_hi, 0")
    p("buffer_store_dwordx2 v[8:9], v13, s[60:63], s18 offen sc1")
    p("s_mov_b32 exec_hi, -1")
    for i in range(16):
        p(f"v_cvt_pk_bf16_f32 v{XR+i}, v{TMP+2*i}, v{TMP+2*i+1}")
        if i % 4 == 3: p(f"buffer_store_dwordx4 {vr(XR+i-3,4)}, v14, s[56:59], s16 offen offset:{128*(i-3)} sc1")

def gen_k3():
    p = Prog()
    p("s_cmp_ge_u32 s2, 144\ns_cbranch_scc1 L3_exit")
    prologue(p)
    wave_id(p, 3)
    p("s_lshr_b32 s29, s2, 3\ns_cmp_ge_u32 s29, 9\ns_cselect_b32 s30, 1, 0\ns_cselect_b32 s31, 9, 0\ns_sub_u32 s29, s29, s31")
    p("s_and_b32 s28, s2, 7\ns_lshl_b32 s28, s28, 1\ns_add_u32 s28, s28, s30")
    k3_body(p, None)
    p.label("L3_exit")
    p("s_endpgm")
    return p.finalize(), dict(name="k3_kernel", grid=144, block=256, lds=73728+1024, vgpr=240, agpr=24)
```

```python
from asmlib import *
from layout import *
from k0 import prologue, wave_id
import math

def mfma16(d, a, b, c): return f"v_mfma_f32_16x16x32_bf16 {d}, {a}, {b}, {c}"

class Sched:
    def __init__(self, p, cap=2): self.p = p; self.cap = cap
    def emit(self, x):
        p = self.p
        if isinstance(x, tuple):
            if x[0] == 'vm': p.vmem(x[1], x[2])
            elif x[0] == 'lds': p.lds(x[1], x[2])
            elif x[0] == 'wait': p.wait(**x[1])
        elif isinstance(x, list):
            for y in x: self.emit(y)
        else: p(x)
    @staticmethod
    def cost(x):
        t = x[1] if isinstance(x, tuple) else x
        return 2 if isinstance(t, str) and (t.startswith('v_exp') or t.startswith('v_rcp')) else 1
    def run(self, mfmas, pre, must, bg, bgstart=8, q=None):
        bg = list(bg); q = q if q is not None else []
        n = len(mfmas)
        for i, m in enumerate(mfmas):
            used = 0
            for x in pre.get(i, []): self.emit(x)
            self.p(m)
            used = len(pre.get(i+1, []))
            for x in must.get(i, []):
                if callable(x): x = x()
                for y in (x if isinstance(x, list) else [x]): self.emit(y); used += self.cost(y)
            if q and used < self.cap:
                x = q.pop(0); self.emit(x); used += 1
            if i >= bgstart:
                while bg and used + self.cost(bg[0]) <= self.cap:
                    x = bg.pop(0); self.emit(x); used += self.cost(x)
        self.left = len(bg) + len(q)
        for x in q: self.emit(x)
        del q[:]
        for x in bg: self.emit(x)

def gen_k4(store_mod=" sc1"):
    p = Prog(); S = Sched(p)
    ACC, PK, TMP, C1T, C2T, KI, EB, EA, HV = [16, 48], 80, 96, 112, 116, 120, 124, [140, 148], 156
    WR = 188
    def hreg(tt, s):
        i = tt*18 + s
        return vr(HV + 4*i, 4) if i < 25 else ar(4*(i-25), 4)
    SLOT = 36864
    p("s_cmp_ge_u32 s2, 256\ns_cbranch_scc1 L4_exit")
    prologue(p)
    wave_id(p, 3)
    p("s_and_b32 s28, s2, 1\ns_lshl_b32 s28, s28, 2\ns_bfe_u32 s29, s2, 0x20003\ns_add_u32 s28, s28, s29")
    p("s_bfe_u32 s29, s2, 0x20001\ns_lshl_b32 s29, s29, 3\ns_lshr_b32 s30, s2, 5\ns_add_u32 s29, s29, s30")
    p("s_lshl_b32 s30, s28, 2\ns_add_u32 s30, s30, s3")
    p("v_and_b32 v1, 63, v0\nv_lshlrev_b32 v2, 4, v1\nv_mov_b32 v3, v2\nv_lshlrev_b32 v8, 3, v1")
    p("v_cmp_gt_u32 vcc, 32, v1\nv_mov_b32 v5, 0x40000000\nv_cndmask_b32 v4, v5, v2, vcc")
    p("s_waitcnt lgkmcnt(0)")
    srd(p, 32, S_WS, S_WS+1, YF, XT_SZ)
    p(f"s_mul_i32 s48, s29, {9*SLOT}\ns_add_u32 s48, s48, {W1}")
    p(f"s_add_u32 s36, s{S_WS}, s48\ns_addc_u32 s37, s{S_WS+1}, 0\ns_mov_b32 s38, {9*SLOT}\ns_mov_b32 s39, 0x20000")
    p(f"s_mul_i32 s48, s29, {9*1024}\ns_add_u32 s48, s48, {EXT}")
    p(f"s_add_u32 s40, s{S_WS}, s48\ns_addc_u32 s41, s{S_WS+1}, 0\ns_mov_b32 s42, {9*1024}\ns_mov_b32 s43, 0x20000")
    srd(p, 44, S_WS, S_WS+1, STATS, STATS_SZ)
    srd(p, 56, S_WS, S_WS+1, AF, AF_SZ)
    ST = ACC[1]
    p("s_lshl_b32 s49, s30, 9")
    for c in range(9):
        p.vmem(f"buffer_load_dwordx2 {vr(ST+2*c,2)}, v8, s[44:47], s49 offen", 'S')
        if c < 8: p("s_add_u32 s49, s49, 16384")
    p("s_mov_b32 s54, 0")
    def ext_ops(ps):
        return [('vm', f"buffer_load_dwordx4 {vr(EA[ps&1],4)}, v4, s[40:43], s54 offen", f'E{ps}'),
                ('vm', f"buffer_load_dwordx4 {vr(EA[ps&1]+4,4)}, v4, s[40:43], s54 offen offset:512", f'E{ps}'),
                "s_add_u32 s54, s54, 1024"]
    for x in ext_ops(0): S.emit(x)
    p("s_mul_i32 s48, s30, 73728")
    p("s_mul_i32 s50, s3, 9216\ns_add_u32 s51, s50, 36864\ns_add_u32 s52, s50, 36864")
    p("s_mov_b32 s55, 0")
    p("s_lshr_b32 s60, s29, 1\ns_mul_i32 s60, s60, 9\ns_and_b32 s61, s29, 1\ns_lshl_b32 s62, s61, 2\ns_add_u32 s62, s62, s60\ns_lshl_b32 s62, s62, 17")
    p("s_lshl_b32 s63, s30, 12\ns_add_u32 s62, s62, s63")
    p("s_add_u32 s60, s60, 8\ns_lshl_b32 s60, s60, 17\ns_add_u32 s60, s60, s63\ns_lshl_b32 s61, s61, 3\ns_add_u32 s60, s60, s61")
    def dma_ops(n):
        L = []
        for k, cnt in ((0, 4), (1, 4), (2, 1)):
            L += [f"s_add_u32 m0, s52, {4096*k}"] + ([f"s_add_u32 s53, s51, {4096*k}"] if k else [])
            L += [('vm', f"buffer_load_dwordx4 v2, s[36:39], s{53 if k else 51} offen offset:{1024*i} lds", f'W{n}') for i in range(cnt)]
        L += [f"s_add_u32 s51, s51, {SLOT}", f"s_add_u32 s52, s52, {SLOT}", f"s_cmp_ge_u32 s52, {4*SLOT}", "s_cselect_b32 s52, s50, s52"]
        return L
    def w0_ops(g):
        L = [f"s_add_u32 s53, s64, {6144*g}", "s_mov_b32 m0, s53"]
        L += [('vm', f"buffer_load_dwordx4 v2, s[36:39], s53 offen offset:{1024*i} lds", f'V{g}') for i in range(3)]
        return L
    p("s_lshr_b32 s64, s3, 1\ns_mul_i32 s64, s64, 18432\ns_and_b32 s65, s3, 1\ns_mul_i32 s65, s65, 3072\ns_add_u32 s64, s64, s65")
    def act_ops(g, tt):
        L = [f"s_add_u32 s53, s48, {tt*18432+g*6144}"]
        for l in range(6):
            if l == 4: L.append("s_add_u32 s53, s53, 4096")
            L.append(('vm', f"buffer_load_dwordx4 {hreg(tt,6*g+l)}, v2, s[32:35], s53 offen offset:{1024*(l%4)}", f'A{g}{tt}'))
        return L
    vmq = w0_ops(0)
    for g in range(3):
        for tt in range(4): vmq += act_ops(g, tt)
        vmq += w0_ops(g+1) if g < 2 else dma_ops(1) + ext_ops(1) + dma_ops(2)
    def vm_next(n=1):
        while n > 0 and vmq:
            x = vmq.pop(0); S.emit(x)
            if isinstance(x, tuple): n -= 1
        if vmq and not any(isinstance(x, tuple) for x in vmq):
            while vmq: S.emit(vmq.pop(0))
    vm_next(24)
    class VP:
        def __init__(s2): s2.k = 0
        def __call__(s2, text):
            for ln in text.split("\n"):
                p0(ln); s2.k += 1
                if s2.k % 8 == 0: vm_next()
        def __getattr__(s2, a): return getattr(p0, a)
    p0 = p; p = VP()
    p.wait(vm='S')
    p(f"v_add_f32 v11, v{ST}, v{ST+2}")
    for c in range(2, 9): p(f"v_add_f32 v11, v11, v{ST+2*c}")
    p(f"v_mul_f32 v11, {f2h(-1/9)}, v11")
    p(f"v_add_f32 v12, v{ST+1}, v{ST+3}")
    for c in range(2, 9): p(f"v_add_f32 v12, v12, v{ST+2*c+1}")
    for c in range(9): p(f"v_add_f32 v{ST+2*c}, v{ST+2*c}, v11")
    p(f"v_mul_f32 v13, v{ST}, v{ST}")
    for c in range(1, 9): p(f"v_fmac_f32 v13, v{ST+2*c}, v{ST+2*c}")
    p(f"v_fmac_f32 v12, {f2h(64.0)}, v13")
    p(f"v_mov_b32 v13, {f2h(1e-5)}\nv_fmac_f32 v13, {f2h(1/576)}, v12")
    p("v_rsq_f32 v12, v13\nv_sqrt_f32 v14, v13")
    C1 = -2*math.sqrt(2/math.pi)*math.log2(math.e); C2 = C1*0.044715
    T0 = TMP
    p(f"v_mul_f32 v{T0}, {f2h(C1)}, v12\nv_mul_f32 v{T0+1}, v12, v12\nv_mul_f32 v{T0+1}, v{T0+1}, v12\nv_mul_f32 v{T0+1}, {f2h(C2)}, v{T0+1}")
    p(f"v_cvt_pk_bf16_f32 v{T0+2}, v11, v11\nv_cvt_pk_bf16_f32 v{T0+4}, v14, v14")
    p(f"v_and_b32 v{T0+5}, 0xffff0000, v{T0+2}\nv_and_b32 v{T0+6}, 0xffff0000, v{T0+4}")
    p(f"v_sub_f32 v11, v11, v{T0+5}\nv_sub_f32 v14, v14, v{T0+6}")
    p(f"v_cvt_pk_bf16_f32 v{T0+3}, v11, v{T0+6}\nv_cvt_pk_bf16_f32 v{T0+4}, v{T0+6}, v14")
    p("v_and_b32 v9, 15, v1\nv_lshlrev_b32 v9, 2, v9")
    for tt in range(4):
        if tt: p("v_add_u32 v9, 64, v9")
        for dst, src in ((C1T+tt, T0), (C2T+tt, T0+1), (KI+tt, 13), (EB+4*tt, T0+2), (EB+4*tt+1, T0+3), (EB+4*tt+2, T0+4)):
            p.lds(f"ds_bpermute_b32 v{dst}, v9, v{src}", 'B')
        if tt & 1: p.wait(lg='B')
    p("v_cmp_gt_u32 vcc, 32, v1")
    for tt in range(4):
        for d in range(3): p(f"v_cndmask_b32 v{EB+4*tt+d}, 0, v{EB+4*tt+d}, vcc")
        p(f"v_mov_b32 v{EB+4*tt+3}, 0")
    p = p0
    def rdW(k):
        g, m = k >> 1, k & 1
        return [('lds', f"ds_read_b128 {ar(WR+24*(k&1)+4*l,4)}, v3 offset:{(m*18+6*g+l)*1024}", 'w') for l in range(6)]
    def gelu_ops(ps):
        a = ACC[ps & 1]; L = []
        last = ps == 8
        for tt in range(4):
            g = [a+4*tt+e for e in range(4)]; u = [a+16+4*tt+e for e in range(4)]
            t = [TMP+8*(tt&1)+e for e in range(4)]; gu = [TMP+8*(tt&1)+4+e for e in range(4)]
            for e in range(4): L.append(f"v_mul_f32 v{t[e]}, v{g[e]}, v{g[e]}")
            for e in range(4): L.append(f"v_fma_f32 v{t[e]}, v{t[e]}, v{C2T+tt}, v{C1T+tt}")
            for e in range(4): L.append(f"v_mul_f32 v{t[e]}, v{t[e]}, v{g[e]}")
            for e in range(4): L.append(f"v_exp_f32 v{t[e]}, v{t[e]}")
            for e in range(4): L.append(f"v_mul_f32 v{gu[e]}, v{g[e]}, v{u[e]}")
            for e in range(4): L.append(f"v_fma_f32 v{t[e]}, v{t[e]}, v{KI+tt}, v{KI+tt}")
            for e in range(4): L.append(f"v_rcp_f32 v{t[e]}, v{t[e]}")
            for e in range(4): L.append(f"v_mul_f32 v{gu[e]}, v{gu[e]}, v{t[e]}")
            o = PK + 4*tt + 2*(ps & 1)
            for c in range(2): L.append(f"v_cvt_pk_bf16_f32 v{o+c}, v{gu[2*c]}, v{gu[2*c+1]}")
            if last: L.append(('vm', f"buffer_store_dwordx2 {vr(o,2)}, v2, s[56:59], s60 offen offset:{1024*tt}{store_mod}", 'st'))
            elif ps & 1: L.append(('vm', f"buffer_store_dwordx4 {vr(PK+4*tt,4)}, v2, s[56:59], s62 offen offset:{1024*tt}{store_mod}", 'st'))
        if ps & 1: L.append("s_add_u32 s62, s62, 131072")
        return L
    def spread(must, ops, lo, hi):
        groups, cur = [], []
        for x in ops:
            cur.append(x)
            if isinstance(x, tuple): groups.append(cur); cur = []
        tail = cur
        for k, g in enumerate(groups):
            i = lo + (hi - lo) * k // len(groups) + len(g) - 1
            for z, x in enumerate(g): must.setdefault(i - len(g) + 1 + z, []).append(x)
        if tail: must.setdefault(hi, []).append(tail)
    def do_pass(ps):
        a = ACC[ps & 1]
        mf, pre, must = [], {}, {}
        starts = []
        for k in range(6):
            g, m = k >> 1, k & 1
            i0 = len(mf); starts.append(i0)
            pre[i0] = [('wait', dict(lg='w', force=True))]
            if k == 0: pre[i0] = [('wait', dict(lg='w', vm=f'E{ps}', force=True))]
            for tt in range(4):
                acc = vr(a + 16*m + 4*tt, 4)
                if g == 0: mf.append(mfma16(acc, vr(EA[ps&1]+4*m, 4), vr(EB+4*tt, 4), "0"))
                for l in range(6): mf.append(mfma16(acc, ar(WR+24*(k&1)+4*l, 4), hreg(tt, 6*g+l), acc))
            j = i0
            if k == 5:
                must[j] = [('wait', dict(vm=f'W{ps+1}', force=True)), "s_barrier"]
                must[j+1] = [[f"s_add_u32 s55, s55, {SLOT}", f"s_cmp_ge_u32 s55, {4*SLOT}", "s_cselect_b32 s55, 0, s55"]]
                must[j+2] = ["v_add_u32 v3, s55, v2"]
                j += 3
            for t_, x in enumerate(rdW((k+1) % 6)): must.setdefault(j + t_, []).append(x)
        spread(must, ext_ops(ps+1) + dma_ops(ps+2), 8, starts[5] - 8)
        S.run(mf, pre, must, gelu_ops(ps-1))
        return S.left
    a = ACC[0]
    for g in range(3):
        if g == 0: mark(p, 0)
        p.wait(vm=f'V{g}'); p("s_barrier")
        if g == 0: mark(p, 1)
        for x in rdW(2*g) + rdW(2*g+1): S.emit(x)
        vm_next()
        for tt in range(4):
            p.wait(vm=[f'A{g}{tt}', 'E0'], lg='w')
            cnt = 0
            for m in range(2):
                acc = vr(a + 16*m + 4*tt, 4)
                ch = [mfma16(acc, vr(EA[0]+4*m, 4), vr(EB+4*tt, 4), "0")] if g == 0 else []
                ch += [mfma16(acc, ar(WR+24*m+4*l, 4), hreg(tt, 6*g+l), acc) for l in range(6)]
                for x in ch:
                    p(x); cnt += 1
                    if cnt % 2 == 0: vm_next()
    vm_next(99)
    p.wait(vm='W1'); p("s_barrier")
    p(f"s_mov_b32 s55, {SLOT}\nv_add_u32 v3, s55, v2")
    for x in rdW(0): S.emit(x)
    mark(p, 2)
    p("s_mov_b32 s66, 0")
    p(".p2align 3")
    p.label("L4_loop")
    i0 = len(p.items)
    l1 = do_pass(1); l2 = do_pass(2)
    print("k4 leftover bg:", l1, l2)
    i1 = len(p.items)
    do_pass(3); do_pass(4)
    merge_loop(p, i0, i1)
    p("s_add_u32 s66, s66, 1\ns_cmp_lt_u32 s66, 4\ns_cbranch_scc1 L4_loop")
    mark(p, 3)
    for x in gelu_ops(8): S.emit(x)
    mark(p, 4)
    p.label("L4_exit")
    p("s_endpgm")
    return p.finalize(), dict(name="k4_kernel", grid=256, block=256, lds=4*SLOT, vgpr=256, agpr=236)
```

```python
from asmlib import *
from layout import *
from k0 import prologue, wave_id

from k4 import mfma16, Sched

def gen_k5():
    p = Prog()
    ACC, AR = 16, 88
    p("s_cmp_ge_u32 s2, 256\ns_cbranch_scc1 L5_exit")
    prologue(p)
    wave_id(p, 3)
    p("s_and_b32 s31, s2, 3")
    p("s_bfe_u32 s28, s2, 0x10002\ns_lshl_b32 s28, s28, 3\ns_bfe_u32 s29, s2, 0x30003\ns_add_u32 s28, s28, s29")
    p("s_lshr_b32 s29, s2, 6")
    p("s_lshl_b32 s30, s28, 2\ns_add_u32 s30, s30, s3")
    p("v_and_b32 v1, 63, v0\nv_lshlrev_b32 v2, 4, v1\nv_mov_b32 v5, v2")
    p("s_and_b32 s55, s31, 1\ns_lshl_b32 s55, s55, 12\nv_add_u32 v6, s55, v2\ns_sub_u32 s55, 4096, s55\nv_add_u32 v7, s55, v2\nv_mov_b32 v3, v6\nv_mov_b32 v4, v7")
    p("s_lshr_b32 s56, s31, 1\ns_lshl_b32 s56, s56, 10\nv_add_u32 v8, s56, v2\nv_xor_b32 v9, 1024, v8")
    p("s_waitcnt lgkmcnt(0)")
    p(f"s_add_u32 s32, s{S_WS}, {hex(AF)}\ns_addc_u32 s33, s{S_WS+1}, 0\ns_add_u32 s34, s31, 1\ns_mul_i32 s34, s34, {36*131072}\ns_mov_b32 s35, 0x20000")
    p(f"s_mul_i32 s48, s29, {144*9216}\ns_mul_i32 s49, s31, {36*9216}\ns_add_u32 s48, s48, s49\ns_add_u32 s48, s48, {hex(W2)}")
    p(f"s_add_u32 s36, s{S_WS}, s48\ns_addc_u32 s37, s{S_WS+1}, 0\ns_mov_b32 s38, {36*9216}\ns_mov_b32 s39, 0x20000")
    srd(p, 40, S_WS, S_WS+1, PART, PART_SZ)
    p(f"s_mul_i32 s48, s31, {36*131072}\ns_lshl_b32 s49, s30, 11\ns_add_u32 s48, s48, s49")
    p("s_mul_i32 s50, s3, 9216\ns_mov_b32 s51, s50\ns_mov_b32 s52, s50")
    p("s_mov_b32 s54, 0")
    def emit(x):
        if isinstance(x, tuple):
            if x[0] == 'vm': p.vmem(x[1], x[2])
            elif x[0] == 'lds': p.lds(x[1], x[2])
        else: p(x)
    def dma_ops(n):
        L = []
        for k, cnt in ((0, 4), (1, 4), (2, 1)):
            L += [f"s_add_u32 m0, s52, {4096*k}", f"s_add_u32 s53, s51, {4096*k}"]
            L += [('vm', f"buffer_load_dwordx4 v2, s[36:39], s53 offen offset:{1024*i} lds", f'W{n}') for i in range(cnt)]
        L += ["s_add_u32 s51, s51, 36864", "s_add_u32 s52, s52, 36864", f"s_cmp_ge_u32 s52, {4*36864}", f"s_cselect_b32 s52, s50, s52"]
        return L
    def a_ops(n):
        L = []
        for g in range(4*n, 4*n+4):
            r = AR + 8*(g % 12)
            L += [('vm', f"buffer_load_dwordx4 {vr(r,4)}, v8, s[32:35], s48 offen", f'A{n}'),
                  ('vm', f"buffer_load_dwordx4 {vr(r+4,4)}, v9, s[32:35], s48 offen", f'A{n}'),
                  "s_add_u32 s48, s48, 131072"]
        return L
    for x in dma_ops(0) + a_ops(0) + dma_ops(1) + a_ops(1): emit(x)
    for i in range(72): p(f"v_mov_b32 v{ACC+i}, 0")
    PKR, XR, GB, VA, RX = 184, 212, 224, 244, AR
    srd(p, 44, S_WS, S_WS+1, X2, XT_SZ)
    srd(p, 56, S_WS, S_WS+1, MOD, MOD_SZ)
    srd(p, 60, S_WS, S_WS+1, FLAGS, FLAGS_SZ)
    srd(p, 64, S_OUT, S_OUT+1, 0, T*D*2)
    p("s_lshl_b32 s8, s28, 2\ns_add_u32 s8, s8, s29")
    def mbox(dst, s_dest, m): p(f"s_lshl_b32 s{dst}, s8, 2\ns_add_u32 s{dst}, s{dst}, s{s_dest}\ns_mul_i32 s{dst}, s{dst}, 3\ns_add_u32 s{dst}, s{dst}, {m-1}\ns_lshl_b32 s{dst}, s{dst}, 2\ns_add_u32 s{dst}, s{dst}, s3\ns_mul_i32 s{dst}, s{dst}, 2560")
    for m in (1, 2, 3):
        p(f"s_xor_b32 s9, s31, {m}"); mbox(10+m, 9, m)
    mbox(16, 31, 1)
    p("s_bitcmp1_b32 s31, 0\ns_cselect_b32 s14, s11, 0x40000000\ns_cselect_b32 s15, s13, s12\ns_cselect_b32 s21, 0x40000000, 0")
    p(f"v_lshlrev_b32 v{VA}, 3, v1\nv_add_u32 v{VA+1}, s21, v{VA}")
    p("s_lshl_b32 s17, s8, 2\ns_add_u32 s17, s17, s3\ns_lshl_b32 s17, s17, 7\ns_lshl_b32 s18, s31, 2\ns_add_u32 s18, s18, s17\ns_mov_b32 s20, 0xffff0000")
    p("v_and_b32 v10, 15, v1\nv_lshrrev_b32 v11, 4, v1")
    p("s_mul_i32 s9, s29, 144\ns_and_b32 s10, s31, 1\ns_lshl_b32 s10, s10, 6\ns_add_u32 s10, s10, s9\ns_add_u32 s9, s9, 128")
    p("v_lshl_add_u32 v12, v11, 3, s10\nv_lshl_add_u32 v13, v11, 2, s9")
    p("s_lshr_b32 s8, s31, 1\ns_lshl_b32 s9, s30, 1\ns_add_u32 s8, s8, s9\ns_mul_i32 s9, s8, 18432")
    p("v_lshlrev_b32 v14, 5, v12\nv_lshl_add_u32 v14, v10, 4, v14")
    p.vmem(f"buffer_load_dwordx4 {vr(XR,4)}, v14, s[44:47], s9 offen", 'X')
    p.vmem(f"buffer_load_dwordx4 {vr(XR+4,4)}, v14, s[44:47], s9 offen offset:1024", 'X')
    p("v_lshrrev_b32 v14, 3, v13\nv_lshlrev_b32 v14, 8, v14\nv_lshl_add_u32 v14, v10, 4, v14\nv_and_b32 v15, 4, v13\nv_lshl_add_u32 v14, v15, 1, v14")
    p.vmem(f"buffer_load_dwordx2 {vr(XR+8,2)}, v14, s[44:47], s9 offen", 'X')
    p(f"s_mov_b32 s10, {5*2304}\nv_lshlrev_b32 v14, 2, v12\nv_lshlrev_b32 v15, 2, v13")
    for k in range(4): p.vmem(f"buffer_load_dwordx4 {vr(GB+4*k,4)}, v14, s[56:59], s10 offen offset:{128*(k>>1)+16*(k&1)}", 'X')
    p.vmem(f"buffer_load_dwordx4 {vr(GB+16,4)}, v15, s[56:59], s10 offen", 'X')
    p("s_lshl_b32 s8, s8, 4\nv_add_u32 v10, s8, v10\nv_mul_u32_u24 v10, 1152, v10\nv_lshl_add_u32 v12, v12, 1, v10\nv_lshl_add_u32 v13, v13, 1, v10\nv_add_u32 v13, s21, v13")
    def rdW(u):
        t = u % 9
        return [('lds', f"ds_read_b128 {ar(16*(u%3)+4*l,4)}, v{3 if t < 4 else 4 if t < 8 else 5} offset:{(9*l+(t-4 if 4 <= t < 8 else t))*1024}", f'w{u}') for l in range(4)]
    mark(p, 0)
    p.wait(vm='W0'); p("s_barrier")
    mark(p, 1)
    for x in rdW(0) + rdW(1): emit(x)
    S = Sched(p)
    def body(it):
        for n in range(3*it, 3*it+3):
            mf, pre, must = [], {}, {}
            for t in range(9):
                u = 9*n + t
                pre[len(mf)] = [('wait', dict(lg=f'w{u}', force=True))] if t else [('wait', dict(lg=f'w{u}', vm=f'A{n}', force=True))]
                j0 = len(mf)
                for tt in range(2):
                    acc = vr(ACC + 4*(9*tt+t), 4)
                    for l in range(4): mf.append(mfma16(acc, ar(16*(u%3)+4*l, 4), vr(AR+8*((4*n+l)%12)+4*tt, 4), acc))
                if t == 7:
                    must[j0] = [('wait', dict(vm=f'W{n+1}', force=True)), "s_barrier"]
                    must[j0+1] = ["s_add_u32 s54, s54, 36864", f"s_cmp_ge_u32 s54, {4*36864}"]
                    must[j0+2] = ["s_cselect_b32 s54, 0, s54", "v_add_u32 v3, s54, v6"]
                    j0 += 3
                if t == 8:
                    must[j0+5] = ["v_add_u32 v4, s54, v7", "v_add_u32 v5, s54, v2"]
                for k, x in enumerate(rdW(u+2)): must.setdefault(j0 + k, []).append(x)
            q = dma_ops(n+2) + a_ops(n+2)
            groups, cur = [], []
            for x in q:
                cur.append(x)
                if isinstance(x, tuple): groups.append(cur); cur = []
            groups[-1] += cur
            free = [i for i in range(72) if i % 8 >= 4 and not (56 <= i < 64)]
            pos = [i for i in range(72) if i % 4 == 1 or False]
            slots = [4*k + (0 if (4*k) % 8 >= 4 else 0) for k in range(17)]
            for k, g in enumerate(groups):
                i = 4*k + 2
                sal = [x for x in g if not isinstance(x, tuple)]; vmx = [x for x in g if isinstance(x, tuple)]
                pre_s = [x for x in g[:g.index(vmx[0])]]; post_s = g[g.index(vmx[0])+1:]
                for z, x in enumerate(pre_s): must.setdefault(i - len(pre_s) + z, []).append(x)
                must.setdefault(i, []).append(vmx[0])
                for z, x in enumerate(post_s): must.setdefault(min(71, i + 1 + z), []).append(x)
            S.run(mf, pre, must, [])
    p("s_mov_b32 s19, 0")
    p(".p2align 3")
    p.label("L5_loop")
    i0 = len(p.items); body(0); i1 = len(p.items); body(1); merge_loop(p, i0, i1)
    p("s_add_u32 s19, s19, 1\ns_cmp_lt_u32 s19, 3\ns_cbranch_scc1 L5_loop")
    mark(p, 2)
    src = {1: 4, 2: 9, 3: 13}
    for mi, m in enumerate((1, 2, 3)):
        for k in range(2):
            a = ACC + 4*(src[m] + 2*k); r = PKR + 8*mi + 4*k
            for d in range(4): p(f"v_cvt_pk_bf16_f32 v{r+d}, v{a+2*d}, v{a+2*d+1}")
            p(f"buffer_store_dwordx4 {vr(r,4)}, v2, s[40:43], s{10+m} offen offset:{1024*k} sc1")
    for k, (t, sr_) in enumerate(((8, 14), (17, 15))):
        a = ACC + 4*t; r = PKR + 24 + 2*k
        for d in range(2): p(f"v_cvt_pk_bf16_f32 v{r+d}, v{a+2*d}, v{a+2*d+1}")
        p(f"buffer_store_dwordx2 {vr(r,2)}, v{VA+0}, s[40:43], s{sr_} offen offset:2048 sc1")
    p("v_mov_b32 v14, 1\nv_mov_b32 v15, 0\ns_mov_b32 s10, 0")
    U = ACC + 40
    for i in range(10): p(f"v_lshlrev_b32 v{U+2*i}, 16, v{XR+i}\nv_and_b32 v{U+2*i+1}, s20, v{XR+i}")
    p("s_waitcnt vmcnt(0)")
    p("s_mov_b64 exec, 1")
    p("buffer_store_dword v14, v15, s[60:63], s18 offen sc1")
    p.label("L5_poll")
    p(f"buffer_load_dwordx4 {vr(RX,4)}, v15, s[60:63], s17 offen sc1")
    p("s_waitcnt vmcnt(0)")
    p(f"v_and_b32 v{RX}, v{RX}, v{RX+1}\nv_and_b32 v{RX+2}, v{RX+2}, v{RX+3}\nv_and_b32 v{RX}, v{RX}, v{RX+2}\nv_readfirstlane_b32 s49, v{RX}")
    p("s_add_u32 s10, s10, 1\ns_cmp_eq_u32 s49, 1\ns_cbranch_scc1 L5_go")
    p("s_cmp_lt_u32 s10, 0x40000\ns_cbranch_scc1 L5_poll")
    p.label("L5_go")
    p("s_mov_b64 exec, -1")
    mark(p, 4)
    p.vm = []
    for m in range(3):
        for k in range(2): p.vmem(f"buffer_load_dwordx4 {vr(RX+12*m+4*k,4)}, v2, s[40:43], s16 offen offset:{1024*k} sc1", f'R{m}')
        p.vmem(f"buffer_load_dwordx2 {vr(RX+12*m+8,2)}, v{VA+1}, s[40:43], s16 offen offset:2048 sc1", f'R{m}')
        if m < 2: p("s_add_u32 s16, s16, 10240")
    own = [ACC+i for i in range(16)] + [ACC+32+i for i in range(4)]
    TT = RX + 40
    for m in range(3):
        p.wait(vm=f'R{m}')
        for i in range(10): p(f"v_lshlrev_b32 v{TT+2*i}, 16, v{RX+12*m+i}\nv_and_b32 v{TT+2*i+1}, s20, v{RX+12*m+i}")
        for i in range(20): p(f"v_add_f32 v{own[i]}, v{own[i]}, v{TT+i}")
    for i in range(20): p(f"v_fmac_f32 v{U+i}, v{own[i]}, v{GB+i}")
    for i in range(10): p(f"v_cvt_pk_bf16_f32 v{XR+i}, v{U+2*i}, v{U+2*i+1}")
    p(f"buffer_store_dwordx4 {vr(XR,4)}, v12, s[64:67], 0 offen")
    p(f"buffer_store_dwordx4 {vr(XR+4,4)}, v12, s[64:67], 0 offen offset:64")
    p(f"buffer_store_dwordx2 {vr(XR+8,2)}, v13, s[64:67], 0 offen")
    mark(p, 3)
    p.label("L5_exit")
    p("s_endpgm")
    return p.finalize(), dict(name="k5_kernel", grid=256, block=256, lds=147456, vgpr=248, agpr=48)
```

```python
T=2048; D=576; H=32; DH=18; F=4608
MOD   = 0x0000000; MOD_SZ = 6*576*4
STATS = 0x0010000; STATS_SZ = 9*2048*8
FLAGS = 0x0040000; FLAGS_SZ = 0x20000
XN    = 0x0100000; XT_SZ = 64*36*1024
XF    = 0x0400000
WQ    = 0x0700000; WQ_SZ = 14*147456
WOS   = 0x0920000; WOS_SZ = 18*36*1024
QM    = 0x0A00000; QM_SZ = 32*65536
QR    = 0x0C00000; QR_SZ = 32*8192
KVH   = 155648; KVC = 19456
KV    = 0x0D00000; KV_SZ = 32*KVH
OF    = 0x1200000
X2    = 0x1500000
W1    = 0x1800000; W1_SZ = 288*36864
YF    = 0x5000000
EXT   = 0x5400000; EXT_SZ = 288*1024
MODB  = 0x0008000; MODB_SZ = 2304
W2    = 0x2300000; W2_SZ = 4*144*9216
AF    = 0x2900000; AF_SZ = 144*128*1024
PART  = 0x3C00000; PART_SZ = 64*4*3*4*2560
S_X=4; S_WQKV=6; S_WO=8; S_WG=12; S_WU=14; S_WD=16; S_C=18; S_WMOD=20; S_OUT=22; S_DBG=24; S_WS=26
```

```python
import sys, os
from asmlib import *
import k0, k1, k2, kf
PROF = 0x8000000
def instrument(body, idx):
    head = "".join(f"    s_mov_b32 s{70+2*i}, 0\n" for i in range(6)) + "    s_memrealtime s[88:89]\n    s_memtime s[90:91]\n    v_readfirstlane_b32 s85, v0\n"
    tail = f"""    s_waitcnt vmcnt(0) lgkmcnt(0)
    s_memrealtime s[92:93]
    s_memtime s[94:95]
    s_load_dwordx2 s[86:87], s[0:1], 88
    s_getreg_b32 s84, hwreg(HW_REG_XCC_ID)
    s_waitcnt lgkmcnt(0)
    s_lshr_b32 s85, s85, 6
    s_lshl_b32 s83, s2, 4
    s_add_u32 s83, s83, s85
    s_lshl_b32 s83, s83, 6
    s_add_u32 s83, s83, {PROF + idx*0x100000}
    s_mov_b64 exec, 1
    v_mov_b32 v0, s88
    v_mov_b32 v1, s90
    v_mov_b32 v2, s92
    v_mov_b32 v3, s94
    v_mov_b32 v4, s83
    v_mov_b32 v6, s84
    v_mov_b32 v7, s70
    v_mov_b32 v8, s72
    v_mov_b32 v9, s74
    v_mov_b32 v10, s76
    v_mov_b32 v11, s78
    v_mov_b32 v12, s80
    v_mov_b32 v13, s96
    global_store_dwordx4 v4, v[0:3], s[86:87]
    global_store_dwordx4 v4, v[6:9], s[86:87] offset:16
    global_store_dwordx4 v4, v[10:13], s[86:87] offset:32
    s_endpgm"""
    return head + body.replace("    s_endpgm", tail)
def build(gens, prof=False):
    hdr = open('adaLN_cond__softmax_full_mha__glu_gated_geglu__prompt.s.ref').read().split('; Override launch')[0]
    ks = [g() for g in gens]
    out = hdr
    for body, m in ks: out += f"; @launch kernel={m['name']} grid=({m['grid']},1,1) block=({m['block']},1,1) lds={m['lds']}\n"
    out += '.amdgcn_target "amdgcn-amd-amdhsa--gfx950"\n'
    descs = ''
    for i, (body, m) in enumerate(ks):
        sm = os.environ.get('STMOD', '')
        if sm:
            body = "\n".join(l + " " + sm if l.strip().startswith("buffer_store") else l for l in body.split("\n"))
        if prof: body = instrument(body, i)
        h, d = kernel_text(m['name'], body, m['vgpr'], m['agpr'])
        out += h; descs += d
    return out + descs
if __name__ == '__main__':
    G = [k0.gen_k0, k1.gen_k1, k2.gen_k2, kf.gen_kf]
    PROFILE[0] = True
    open(os.environ.get('PROF', 'prof.s'), 'w').write(build(G, True))
    PROFILE[0] = False
    txt = build(G)
    dst = sys.argv[1] if len(sys.argv) > 1 else 'adaLN_cond__softmax_full_mha__glu_gated_geglu__prompt.s'
    open(dst, 'w').write(txt)
    print("written", dst, len(txt))
```

```python
import re

REG_RE = re.compile(r'^(-|abs\()?([vas])(\d+)\)?$')
RNG_RE = re.compile(r'^(-)?([vas])\[(\d+):(\d+)\]$')

def regs_of(op):
    op = op.strip()
    m = RNG_RE.match(op)
    if m: return [(m.group(2), i) for i in range(int(m.group(3)), int(m.group(4)) + 1)]
    m = REG_RE.match(op)
    if m: return [(m.group(2), int(m.group(3)))]
    if op == 'vcc': return [('s', 'vcc')]
    if op == 'exec': return [('s', 'exec')]
    if op == 'm0': return [('s', 'm0')]
    return []

TRANS = ('v_exp_f32', 'v_log_f32', 'v_rcp_f32', 'v_rsq_f32', 'v_sqrt_f32', 'v_sin_f32', 'v_cos_f32')
def mfma_passes(mn):
    if '32x32x4_2b' in mn: return 16
    if '32x32' in mn: return 8
    if '16x16' in mn: return 4
    raise ValueError(mn)

class Ins:
    def __init__(self, text):
        self.text = text
        t = text.split(';')[0].strip()
        parts = t.split(None, 1)
        self.mn = parts[0]
        rest = parts[1] if len(parts) > 1 else ''
        ops, depth, cur = [], 0, ''
        for ch in rest:
            if ch == '[': depth += 1
            if ch == ']': depth -= 1
            if ch == ',' and depth == 0: ops.append(cur.strip()); cur = ''
            else: cur += ch
        if cur.strip(): ops.append(cur.strip())
        self.mods = ''
        if ops:
            last = ops[-1].split(None, 1)
            ops[-1] = last[0]
            if len(last) > 1: self.mods = last[1]
        self.ops = ops
        mn = self.mn
        self.is_mfma = mn.startswith('v_mfma')
        self.is_valu = mn.startswith('v_') and not self.is_mfma
        self.is_trans = any(mn.startswith(x) for x in TRANS)
        self.is_ds = mn.startswith('ds_')
        self.is_vmem = mn.startswith('buffer_') or mn.startswith('global_')
        self.is_salu = mn.startswith('s_')
        self.is_dpp = 'dpp' in mn or 'row_' in self.mods or 'quad_perm' in self.mods
        self.is_perml = mn.startswith('v_permlane')
        R = [regs_of(o) for o in ops]
        rd, wr = [], []
        if self.is_mfma:
            wr = R[0]; self.srcA, self.srcB, self.srcC = R[1], R[2], R[3]; rd = R[1] + R[2] + R[3]
        elif self.is_valu:
            if mn.startswith('v_cmp'):
                wr = R[0]; rd = sum(R[1:], [])
                if mn.startswith('v_cmpx'): wr = wr + [('s', 'exec')]
            elif self.is_perml:
                wr = R[0] + R[1]; rd = R[0] + R[1]
            elif mn.startswith('v_add_co') or mn.startswith('v_sub_co') or mn.startswith('v_addc_co'):
                wr = R[0] + R[1]; rd = sum(R[2:], [])
            elif mn == 'v_nop':
                pass
            else:
                wr = R[0]; rd = sum(R[1:], [])
                if mn.startswith('v_fmac') or mn.startswith('v_dot2c') or 'UNUSED_PRESERVE' in self.mods or self.is_dpp or mn.startswith('v_writelane'):
                    rd = rd + R[0]
                if mn.startswith('v_cndmask') and len(ops) == 3: rd = rd + [('s', 'vcc')]
        elif self.is_ds:
            if mn.startswith('ds_read') or mn.startswith('ds_bpermute') or mn.startswith('ds_swizzle') or '_rtn' in mn:
                wr = R[0]; rd = sum(R[1:], [])
            else:
                rd = sum(R, [])
        elif self.is_vmem:
            lds = bool(re.search(r'\blds\b', self.mods)) or '_lds_' in mn
            self.lds = lds
            if ('load' in mn) and not lds:
                wr = R[0]; rd = sum(R[1:], [])
            elif 'atomic' in mn and 'sc0' in self.mods:
                wr = R[0]; rd = sum(R, [])
            else:
                rd = sum(R, [])
                if lds: rd = rd + [('s', 'm0')]
        elif self.is_salu:
            if mn.startswith('s_cmp') or mn.startswith('s_cbranch') or mn in ('s_branch', 's_waitcnt', 's_barrier', 's_nop', 's_endpgm', 's_setprio', 's_sleep') or mn.startswith('s_bitcmp'):
                rd = sum(R, [])
            else:
                wr = R[0] if R else []; rd = sum(R[1:], [])
                if 'saveexec' in mn: wr = wr + [('s', 'exec')]
        self.rd, self.wr = set(rd), set(wr)
        self.states = 1
        if mn == 's_nop': self.states = int(ops[0], 0) + 1

def need_states(p, c):
    n = 0
    pv = {r for r in p.wr if r[0] in 'va'}
    ps = {r for r in p.wr if r[0] == 's'}
    if p.is_valu:
        if c.is_mfma and (pv & c.rd): n = max(n, 2)
        if c.is_perml and (pv & c.rd): n = max(n, 2)
        if c.is_valu and c.is_dpp and (pv & c.rd): n = max(n, 2)
        if c.mn.startswith('v_readfirstlane') or c.mn.startswith('v_readlane'):
            if pv & c.rd: n = max(n, 1)
        if p.is_trans and c.is_valu and not c.is_trans and (pv & c.rd): n = max(n, 1)
        if p.is_trans and (c.is_vmem or c.is_ds) and (pv & c.rd): n = max(n, 1)
        if ('sdwa' in p.mn or 'op_sel' in p.mods and not p.mn.startswith('v_pk')) and c.is_valu and (pv & (c.rd | c.wr)): n = max(n, 1)
        if p.mn.startswith('v_dot2') and (pv & (c.rd | c.wr)):
            if not (c.mn == p.mn and c.is_valu and pv & set(regs_of(c.ops[-1] if not c.mn.startswith('v_dot2c') else c.ops[0])) and not (pv & set(regs_of(c.ops[1]) + regs_of(c.ops[2])))):
                n = max(n, 3)
        if ps:
            if c.is_vmem and (ps & c.rd): n = max(n, 5)
            if c.is_valu and (ps & c.rd): n = max(n, 2)
            if (c.mn.startswith('v_readlane') or c.mn.startswith('v_writelane')) and (ps & c.rd): n = max(n, 4)
            if ('s', 'exec') in ps:
                if c.is_mfma: n = max(n, 4)
                if c.is_dpp: n = max(n, 5)
                if c.is_perml or c.mn.startswith('v_read') : n = max(n, 4)
            if c.is_salu and (ps & c.rd): n = max(n, 1)
    if p.is_salu and ('s', 'm0') in p.wr and c.is_vmem and ('s', 'm0') in c.rd: n = max(n, 1)
    if p.is_mfma:
        ps_ = mfma_passes(p.mn)
        D = p.wr
        if c.is_mfma:
            if D & set(c.srcA + c.srcB): n = max(n, {4: 8, 8: 12, 16: 20}[ps_])
            if D & set(c.srcC):
                same = (set(c.srcC) == D and mfma_passes(c.mn) == ps_)
                if not same: n = max(n, {4: 6, 8: 10, 16: 18}[ps_])
            elif D & c.wr:
                n = max(n, {4: 6, 8: 10, 16: 18}[ps_])
        elif (c.is_valu or c.is_vmem or c.is_ds) and (D & (c.rd | c.wr)):
            n = max(n, {4: 8, 8: 12, 16: 20}[ps_])
        if c.is_valu and (set(p.srcC) & c.wr): n = max(n, {4: 3, 8: 7, 16: 15}[ps_])
        if (c.is_ds or c.is_vmem) and (set(p.srcC) & c.wr): n = max(n, {4: 3, 8: 7, 16: 15}[ps_])
    if p.is_vmem and 'store' in p.mn and ('x4' in p.mn or 'x3' in p.mn):
        data = set(regs_of(p.ops[0])) if p.mn.startswith('buffer') else set(regs_of(p.ops[1]))
        if data & c.wr: n = max(n, 2 if c.is_valu else 1)
    return n

class Prog:
    def __init__(self):
        self.items = []
        self.vm = []
        self.lg = []
    def __call__(self, text):
        for ln in text.split('\n'):
            ln = ln.strip()
            if not ln or ln.startswith(';'): continue
            if ln.endswith(':'): self.items.append(('l', ln[:-1]))
            elif ln.startswith('.'): self.items.append(('r', ln))
            else: self.items.append(('i', Ins(ln)))
    def label(self, l): self.items.append(('l', l))
    def vmem(self, text, tag=None):
        self(text); self.vm.append(tag)
    def lds(self, text, tag=None):
        self(text); self.lg.append(tag)
    def _n(self, q, tags):
        if not isinstance(tags, (list, tuple, set)): tags = [tags]
        last = -1
        for i, t in enumerate(q):
            if t in tags: last = i
        return last
    def wait(self, vm=None, lg=None, force=False):
        s = []
        if vm is not None:
            last = len(self.vm) - 1 if vm == 'all' else self._n(self.vm, vm)
            if last >= 0:
                n = len(self.vm) - 1 - last
                assert n <= 63, "vmcnt overflow %d" % n
                s.append(f"vmcnt({n})"); self.vm = self.vm[last + 1:]
            elif force: s.append(f"vmcnt({min(63, len(self.vm))})")
        if lg is not None:
            last = len(self.lg) - 1 if lg == 'all' else self._n(self.lg, lg)
            if last >= 0:
                n = len(self.lg) - 1 - last
                assert n <= 15, "lgkmcnt overflow %d" % n
                s.append(f"lgkmcnt({n})"); self.lg = self.lg[last + 1:]
            elif force: s.append(f"lgkmcnt({min(15, len(self.lg))})")
        if s: self("s_waitcnt " + " ".join(s))
    def finalize(self, backedges=True):
        out = []
        hist = []
        W = 24
        npad = 0
        def required(c, hist):
            need = 0; dist = 0
            for p in reversed(hist):
                k = need_states(p, c)
                if k - dist > need: need = k - dist
                dist += p.states
                if dist >= W: break
            return need
        label_pos = {}
        flat = []
        for kind, x in self.items:
            if kind == 'i':
                n = required(x, hist)
                while n > 0:
                    k = min(n, 16)
                    nop = Ins(f"s_nop {k-1}")
                    out.append(('i', nop)); hist.append(nop); flat.append(nop); n -= k; npad += 1
                out.append(('i', x)); hist.append(x); flat.append(x)
                hist = hist[-W:]
                if x.mn in ('s_endpgm', 's_branch'): hist = []
            else:
                if kind == 'l': label_pos[x] = len(flat)
                out.append((kind, x))
        errs = []
        idx = 0
        for i, x in enumerate(flat):
            if x.mn.startswith('s_cbranch') or x.mn == 's_branch':
                tgt = x.ops[0]
                if tgt in label_pos:
                    h = flat[max(0, i - W):i + 1]
                    for c in flat[label_pos[tgt]:label_pos[tgt] + W]:
                        n = required(c, h)
                        if n > 0: errs.append(f"branch-edge hazard -> {tgt}: {c.text} needs {n}")
                        h = h + [c]
                        if c.mn in ('s_endpgm', 's_branch'): break
        last = None
        NOSCC = ('s_mov', 's_movk', 's_mul_i32', 's_mul_hi', 's_cselect', 's_waitcnt', 's_barrier', 's_nop', 's_cbranch', 's_branch', 's_load', 's_memtime', 's_memrealtime', 's_setprio', 's_endpgm', 's_sleep', 's_getreg', 's_getpc')
        for x in flat:
            if x.mn.startswith('s_cselect') or x.mn.startswith('s_cbranch_scc'):
                if not (last and (last.mn.startswith('s_cmp') or last.mn.startswith('s_bitcmp'))): errs.append(f"SCC consumer {x.text} after {last.text if last else None}")
            if x.mn.startswith('s_addc') and not (last and last.mn.startswith('s_add_u32')): errs.append(f"addc after {last.text if last else None}")
            if x.is_salu and not any(x.mn.startswith(k) for k in NOSCC): last = x
        lastw = {}
        for x in flat:
            if x.is_vmem and x.mn.startswith('buffer'):
                q = [o for o in x.ops if re.match(r'^s\[\d+:\d+\]$', o)]
                d = regs_of(q[0])[0][1]
                w0, w1, w3 = lastw.get(d), lastw.get(d+1), lastw.get(d+3)
                ok1 = w1 is not None and (w1.mn in ('s_addc_u32', 's_load_dwordx16', 's_load_dwordx8') or (w1.mn in ('s_mov_b32', 's_cselect_b32') and re.match(r'^s\d+$', w1.ops[1])))
                ok0 = w0 is not None and (w0.mn in ('s_load_dwordx16', 's_load_dwordx8') or (w0.mn in ('s_mov_b32', 's_cselect_b32', 's_add_u32') and re.match(r'^s\d+$', w0.ops[1]) and int(w0.ops[1][1:]) < 28))
                ok3 = w3 is not None and w3.text.endswith('0x20000')
                if not (ok0 and ok1 and ok3): errs.append(f"SRD s[{d}] suspicious at {x.text}: {w0 and w0.text} | {w1 and w1.text} | {w3 and w3.text}")
            for r in x.wr:
                if r[0] == 's' and isinstance(r[1], int): lastw[r[1]] = x
        if errs: raise RuntimeError("\n".join(errs))
        self.npad = npad
        txt = []
        for kind, x in out:
            if kind == 'i': txt.append("    " + x.text)
            elif kind == 'l': txt.append(x + ":")
            else: txt.append(x)
        return "\n".join(txt)

def vr(a, n=1, f='v'):
    return f"{f}{a}" if n == 1 else f"{f}[{a}:{a+n-1}]"
def sr(a, n=1): return vr(a, n, 's')
def ar(a, n=1): return vr(a, n, 'a')

def srd(p, d, base_lo, base_hi, off, size):
    if off:
        p(f"s_add_u32 s{d}, s{base_lo}, {hex(off)}")
        p(f"s_addc_u32 s{d+1}, s{base_hi}, 0")
    else:
        p(f"s_mov_b32 s{d}, s{base_lo}")
        p(f"s_mov_b32 s{d+1}, s{base_hi}")
    p(f"s_mov_b32 s{d+2}, {hex(size)}")
    p(f"s_mov_b32 s{d+3}, 0x20000")

def kernel_text(name, body, vgpr, agpr=0, sgpr=100):
    acc = (vgpr + 3) // 4 * 4
    nfv = acc + agpr if agpr else vgpr
    head = f""".text
.globl {name}
.p2align 8
.type {name},@function
{name}:
{body}
"""
    desc = f""".section .rodata,"a"
.p2align 6
.amdhsa_kernel {name}
  .amdhsa_next_free_vgpr {nfv}
  .amdhsa_next_free_sgpr {sgpr}
  .amdhsa_accum_offset {acc}
  .amdhsa_group_segment_fixed_size 0
  .amdhsa_kernarg_size 96
  .amdhsa_user_sgpr_count 2
  .amdhsa_user_sgpr_kernarg_segment_ptr 1
  .amdhsa_system_sgpr_workgroup_id_x 1
  .amdhsa_float_denorm_mode_32 3
.end_amdhsa_kernel
"""
    return head, desc

import struct
def f2h(x): return hex(struct.unpack('<I', struct.pack('<f', x))[0])

def merge_loop(p, i0, i1):
    A = p.items[i0:i1]; B = p.items[i1:]
    assert len(A) == len(B), (len(A), len(B))
    for k, (x, y) in enumerate(zip(A, B)):
        if x[0] != 'i':
            assert x == y; continue
        if x[1].text == y[1].text: continue
        assert x[1].mn == 's_waitcnt' and y[1].mn == 's_waitcnt', (x[1].text, y[1].text)
        fx = dict(re.findall(r'(\w+)\((\d+)\)', x[1].text)); fy = dict(re.findall(r'(\w+)\((\d+)\)', y[1].text))
        assert fx.keys() == fy.keys(), (x[1].text, y[1].text)
        p.items[i0+k] = ('i', Ins("s_waitcnt " + " ".join(f"{c}({min(int(fx[c]), int(fy[c]))})" for c in fx)))
    del p.items[i1:]

PROFILE = [False]
def mark(p, i):
    if PROFILE[0]: p(f"s_memtime s[{70+2*i}:{71+2*i}]")

def code_prefetch(p, uid, start, end, s_wave, per_wave, vtmp, vdst, sa, v_lane16):
    p(f"s_getpc_b64 s[{sa}:{sa+1}]")
    p.label(f"Lpc{uid}")
    p(f"s_add_u32 s{sa}, s{sa}, {start}-Lpc{uid}\ns_addc_u32 s{sa+1}, s{sa+1}, 0")
    p(f"s_mul_i32 s{sa+2}, s{s_wave}, {per_wave*1024}\nv_add_u32 v{vtmp}, s{sa+2}, v{v_lane16}")
    for i in range(per_wave):
        p(f"v_min_u32 v{vtmp+1}, {end}-{start}-16, v{vtmp}")
        p(f"global_load_dwordx4 v[{vdst}:{vdst+3}], v{vtmp+1}, s[{sa}:{sa+1}]")
        if i + 1 < per_wave: p(f"v_add_u32 v{vtmp}, 1024, v{vtmp}")
```

```python
from asmlib import *
from layout import *
from k0 import prologue, wave_id
import math

def mfma32(d, a, b, c):
    return f"v_mfma_f32_32x32x16_bf16 {d}, {a}, {b}, {c}"

def kloop(p, uid, nt, swap, ACT, ACC, COEF, TMP, HB, v_lane16, v_wrd, v_crd, s_act, s_w, s_m0, srd_act, srd_w, modulate, pre_barrier=None, s_cnt=69, s_mask=68, s_tmp=67):
    CH = 6; NW = CH*nt//4
    def emit(x):
        if isinstance(x, tuple):
            if x[0] == 'vm': p.vmem(x[1], x[2])
            elif x[0] == 'lds': p.lds(x[1], x[2])
            else: p.wait(**x[1])
        else: p(x)
    def actreg(s): return ACT + 4*(s % 18)
    def loads(c):
        L = [f"s_mov_b32 m0, s{s_m0}"]
        for i in range(NW):
            if i == 4: L += [f"s_add_u32 m0, s{s_m0}, 4096", f"s_add_u32 s{s_tmp}, s{s_w}, 4096"]
            L.append(('vm', f"buffer_load_dwordx4 v{v_lane16}, s[{srd_w}:{srd_w+3}], s{s_w if i < 4 else s_tmp} offen offset:{1024*(i%4)} lds", f'W{c}'))
        L += [f"s_add_u32 s{s_w}, s{s_w}, {CH*nt*1024}", f"s_add_u32 s{s_m0}, s{s_m0}, {CH*nt*1024}"]
        for i in range(CH):
            if i == 4: L.append(f"s_add_u32 s{s_act}, s{s_act}, 4096")
            L.append(('vm', f"buffer_load_dwordx4 {vr(actreg(CH*c+i),4)}, v{v_lane16}, s[{srd_act}:{srd_act+3}], s{s_act} offen offset:{1024*(i%4)}", f'A{CH*c+i}'))
        L.append(f"s_add_u32 s{s_act}, s{s_act}, 2048")
        return L
    def rdWo(s, base):
        L = []
        for t in range(nt):
            off = ((s-base)*nt+t)*1024
            L.append(('lds', f"ds_read_b128 {ar(16*(s%3)+4*t,4)}, v{v_wrd + off//65536} offset:{off%65536}", f'w{s}'))
        return L
    def rdCo(s, base):
        return [('lds', f"ds_read_b128 {vr(COEF+16*(s%3)+4*q,4)}, v{v_crd} offset:{128*(s-base)+16*q}", f'c{s}') for q in range(4)]
    def mod_ops(s):
        c = COEF + 16*(s%3); x = actreg(s); hb = HB + 4*(s&1)
        L = []
        for d in range(4): L += [f"v_lshlrev_b32 v{TMP+2*d}, 16, v{x+d}", f"v_and_b32 v{TMP+2*d+1}, s{s_mask}, v{x+d}"]
        L += [f"v_fmac_f32 v{c+8+j}, v{TMP+j}, v{c+j}" for j in range(8)]
        L += [f"v_cvt_pk_bf16_f32 v{hb+d}, v{c+8+2*d}, v{c+8+2*d+1}" for d in range(4)]
        return L
    def hreg(s): return vr(HB + 4*(s&1), 4) if modulate else vr(actreg(s), 4)
    for x in loads(0): emit(x)
    p(f"s_mov_b32 s{s_mask}, 0xffff0000\ns_mov_b32 s{s_cnt}, 0")
    z = [f"v_mov_b32 v{ACC+i}, 0" for i in range(16*nt)]
    for x in loads(1):
        emit(x)
        if isinstance(x, tuple):
            for y in z[:6]: p(y)
            z = z[6:]
    for y in z: p(y)
    if pre_barrier: pre_barrier()
    mark(p, 0)
    p.wait(vm='W0', lg='all'); p("s_barrier")
    mark(p, 1)
    if modulate:
        for x in rdCo(0, 0) + rdWo(0, 0) + rdCo(1, 0): emit(x)
        p.wait(vm='A0', lg='c0')
        for x in rdWo(1, 0) + rdCo(2, 0): emit(x)
        for x in mod_ops(0): p(x)
    else:
        for x in rdWo(0, 0) + rdWo(1, 0): emit(x)
    def body(it):
        base = 18*it
        ldq = []
        for s in range(base, base+18):
            nx = s + 1
            if s % CH == 0: ldq = loads(s//CH + 2)
            p.wait(vm=f'A{nx}' if modulate else f'A{s}', lg=[f'w{s}', f'c{nx}'], force=True)
            fill = []
            if (s+2) % CH == 0: fill += [('wait', dict(vm=f'W{(s+2)//CH}', force=True)), "s_barrier"]
            if modulate:
                rd = rdWo(s+2, base) + rdCo(s+3, base); mo = mod_ops(nx)
                for k in range(4): fill += rd[2*k:2*k+2] + mo[5*k:5*k+5]
            else: fill += rdWo(s+2, base)
            nv = sum(isinstance(x, tuple) for x in ldq); left = CH - s % CH
            take = (nv + left - 1) // left
            vm = []
            while ldq and (take > 0 or (not any(isinstance(y, tuple) for y in ldq))):
                x = ldq.pop(0); vm.append(x)
                if isinstance(x, tuple): take -= 1
            groups, cur = [], []
            for x in vm:
                cur.append(x)
                if isinstance(x, tuple): groups.append(cur); cur = []
            if cur: groups[-1] += cur
            if s == base + 17:
                fill += [f"v_add_u32 v{v_wrd}, {18*nt*1024}, v{v_wrd}"] + ([f"v_add_u32 v{v_wrd+1}, {18*nt*1024}, v{v_wrd+1}", f"v_add_u32 v{v_crd}, {18*128}, v{v_crd}"] if modulate else [])
            per = (len(fill) + nt - 1) // nt
            for t in range(nt):
                acc = vr(ACC + 16*t, 16); w = ar(16*(s%3) + 4*t, 4)
                p(mfma32(acc, hreg(s), w, acc) if swap else mfma32(acc, w, hreg(s), acc))
                for x in fill[t*per:(t+1)*per]: emit(x)
                gi = [g for k, g in enumerate(groups) if (k*nt)//max(1, len(groups)) == t]
                for g in gi:
                    for x in g: emit(x)
    p(".p2align 3")
    p.label(f"L{uid}_loop")
    i0 = len(p.items); body(0); i1 = len(p.items); body(1); merge_loop(p, i0, i1)
    p(f"s_add_u32 s{s_cnt}, s{s_cnt}, 1\ns_cmp_lt_u32 s{s_cnt}, 2\ns_cbranch_scc1 L{uid}_loop")
    mark(p, 4)

def gen_k1():
    p = Prog()
    p("s_cmp_ge_u32 s2, 256\ns_cbranch_scc1 L1_exit")
    prologue(p)
    wave_id(p, 3)
    p("s_and_b32 s28, s2, 3\ns_lshl_b32 s28, s28, 2\ns_bfe_u32 s29, s2, 0x20003\ns_add_u32 s28, s28, s29")
    p("s_lshr_b32 s30, s2, 5\ns_cmp_eq_u32 s30, 7\ns_cbranch_scc1 L1_idle\ns_bfe_u32 s29, s2, 0x10002\ns_mul_i32 s29, s29, 7\ns_add_u32 s29, s29, s30")
    p("s_cmp_ge_u32 s29, 14\ns_cbranch_scc1 L1_exit")
    p("s_lshl_b32 s30, s28, 2\ns_add_u32 s30, s30, s3")
    p("v_and_b32 v1, 63, v0\nv_lshlrev_b32 v2, 4, v1")
    p("v_add_u32 v3, 5120, v2\nv_add_u32 v4, 0x10000, v3")
    p("v_lshrrev_b32 v6, 5, v1")
    CO = 0
    p("v_lshlrev_b32 v5, 6, v6")
    p("s_waitcnt lgkmcnt(0)")
    mark(p, 5)
    srd(p, 32, S_WS, S_WS+1, XN, XT_SZ)
    srd(p, 36, S_WS, S_WS+1, WQ, WQ_SZ)
    p("s_add_u32 s34, s30, 1\ns_mul_i32 s34, s34, 36864")
    srd(p, 40, S_WS, S_WS+1, MOD, MOD_SZ)
    srd(p, 44, S_WS, S_WS+1, QM, KV + KV_SZ - QM)
    p("v_lshlrev_b32 v7, 4, v0")
    p.vmem("buffer_load_dwordx4 v[8:11], v7, s[40:43], 0 offen offset:2304", 'M')
    p.vmem("buffer_load_dwordx4 v[12:15], v7, s[40:43], 0 offen", 'M')
    p("s_mul_i32 s48, s30, 36864")
    ACT, ACC, COEF, TMP, HB = 24, 96, 160, 208, 216
    def pre_barrier():
        p.wait(vm='M')
        p(f"v_lshrrev_b32 v16, 1, v0\nv_lshlrev_b32 v16, 6, v16\nv_and_b32 v17, 1, v0\nv_lshl_add_u32 v16, v17, 4, v16")
        p("v_cmp_gt_u32 vcc, 144, v0\ns_and_saveexec_b64 s[52:53], vcc")
        p.lds("ds_write_b128 v16, v[8:11]")
        p.lds("ds_write_b128 v16, v[12:15] offset:32")
        p("s_mov_b64 exec, s[52:53]")
    p("s_mul_i32 s49, s29, 147456\ns_add_u32 s38, s49, 147456\ns_mul_i32 s50, s3, 6144\ns_add_u32 s49, s49, s50\ns_add_u32 s50, s50, 5120")
    p("s_cmp_ge_u32 s29, 9\ns_cbranch_scc1 L1_v")
    vm0, lg0 = list(p.vm), list(p.lg)
    kloop(p, '1a', 4, False, ACT, ACC, COEF, TMP, HB, 2, 3, 5, 48, 49, 50, 32, 36, True, pre_barrier)
    qs = 18**-0.5 * math.log2(math.e)
    p("s_cmp_eq_u32 s29, 8\ns_cbranch_scc1 L1_rem")
    p("s_and_b32 s51, s29, 3\ns_lshl_b32 s51, s51, 3")
    p("s_cmp_lt_u32 s29, 4\ns_cbranch_scc0 L1_k")
    p(f"s_mov_b32 s52, {f2h(qs)}\ns_mov_b32 s58, 65536\ns_lshl_b32 s54, s30, 10\ns_branch L1_main")
    p.label("L1_k")
    p(f"s_mov_b32 s52, 1.0\ns_mov_b32 s58, {KVH}\ns_lshr_b32 s54, s30, 3\ns_mul_i32 s54, s54, {KVC}\ns_and_b32 s55, s30, 7\ns_lshl_b32 s55, s55, 10\ns_add_u32 s54, s54, s55\ns_add_u32 s54, s54, {KV-QM}")
    p.label("L1_main")
    p("s_mul_i32 s55, s51, s58\ns_add_u32 s54, s54, s55")
    p("s_nop 7")
    for hh in range(8):
        a = ACC + 8*hh
        for j in range(4): p(f"v_pk_mul_f32 {vr(a+2*j,2)}, {vr(a+2*j,2)}, s[52:53] op_sel_hi:[1,0]")
        for d in range(4): p(f"v_cvt_pk_bf16_f32 v{ACT+4*hh+d}, v{a+2*d}, v{a+2*d+1}")
        p(f"buffer_store_dwordx4 {vr(ACT+4*hh,4)}, v2, s[44:47], s54 offen")
        if hh < 7: p("s_add_u32 s54, s54, s58")
    p("s_endpgm")
    p.label("L1_rem")
    p("v_and_b32 v7, 31, v1\nv_lshlrev_b32 v7, 2, v7")
    p("v_lshl_add_u32 v8, v6, 14, v7")
    p(f"v_mul_u32_u24 v9, {2*KVH}, v6\nv_add_u32 v9, v9, v7")
    p(f"s_lshl_b32 s52, s30, 7\ns_add_u32 s52, s52, {QR-QM}")
    p(f"s_lshr_b32 s54, s30, 3\ns_mul_i32 s54, s54, {KVC}\ns_and_b32 s55, s30, 7\ns_lshl_b32 s55, s55, 7\ns_add_u32 s54, s54, s55\ns_add_u32 s54, s54, {KV-QM+8192}")
    p(f"s_mov_b32 s56, {f2h(qs)}")
    p("s_nop 7")
    for t in range(4):
        for i in range(4):
            for jj in range(2):
                a = ACC + 16*t + 4*i + 2*jj
                head = 16*(t&1) + 4*i + jj
                if t < 2: p(f"v_mul_f32 v{a}, s56, v{a}\nv_mul_f32 v{a+1}, s56, v{a+1}")
                p(f"v_cvt_pk_bf16_f32 v{a}, v{a}, v{a+1}")
                if t < 2:
                    p(f"s_add_u32 s57, s52, {head*8192}\nbuffer_store_dword v{a}, v8, s[44:47], s57 offen")
                else:
                    p(f"s_add_u32 s57, s54, {head*KVH}\nbuffer_store_dword v{a}, v9, s[44:47], s57 offen")
    p("s_endpgm")
    p.label("L1_v")
    p.vm, p.lg = list(vm0), list(lg0)
    p("s_sub_u32 s51, s29, 9")
    kloop(p, '1b', 4, True, ACT, ACC, COEF, TMP, HB, 2, 3, 5, 48, 49, 50, 32, 36, True, pre_barrier)
    p(f"s_lshr_b32 s54, s30, 3\ns_mul_i32 s54, s54, {KVC}\ns_and_b32 s55, s30, 7\ns_mul_i32 s55, s55, 1280\ns_add_u32 s54, s54, s55\ns_add_u32 s54, s54, {KV-QM+9216}")
    p("s_lshl_b32 s52, s51, 7")
    p("v_and_b32 v7, 31, v1\nv_add_u32 v7, s52, v7")
    p(f"s_mov_b32 s53, {KVH}")
    p("v_mov_b32 v20, 0x3f803f80\nv_mov_b32 v21, 0x3f803f80\nv_mov_b32 v22, 0x3f803f80\nv_mov_b32 v23, 0x3f803f80\nv_mov_b32 v16, 0\nv_mov_b32 v17, 0\nv_mov_b32 v18, 0\nv_mov_b32 v19, 0")
    for t in range(4):
        if t == 2: p("s_cmp_eq_u32 s51, 4\ns_cbranch_scc1 L1_exit")
        p(f"v_add_u32 v8, {32*t}, v7")
        p("v_mul_u32_u24 v9, 3641, v8\nv_lshrrev_b32 v9, 16, v9")
        p("v_mul_u32_u24 v10, 18, v9\nv_sub_u32 v10, v8, v10")
        p("v_mul_lo_u32 v11, v9, s53\nv_lshl_add_u32 v11, v10, 4, v11\nv_mul_u32_u24 v12, 320, v6\nv_add_u32 v11, v11, v12")
        for sg in range(2):
            a = ACC + 16*t + 8*sg; r = ACT + 8*t + 4*sg
            for d in range(4): p(f"v_cvt_pk_bf16_f32 v{r+d}, v{a+2*d}, v{a+2*d+1}")
            p(f"buffer_store_dwordx4 {vr(r,4)}, v11, s[44:47], s54 offen offset:{640*sg}")
        p("v_cmp_eq_u32 vcc, 17, v10\ns_and_saveexec_b64 s[56:57], vcc")
        p("buffer_store_dwordx4 v[20:23], v11, s[44:47], s54 offen offset:16")
        p("buffer_store_dwordx4 v[20:23], v11, s[44:47], s54 offen offset:656")
        p("buffer_store_dwordx4 v[16:19], v11, s[44:47], s54 offen offset:32")
        p("buffer_store_dwordx4 v[16:19], v11, s[44:47], s54 offen offset:672")
        p("s_mov_b64 exec, s[56:57]")
    p("s_endpgm")
    p.label("L1_idle")
    p("v_and_b32 v1, 63, v0\nv_lshlrev_b32 v2, 4, v1")
    code_prefetch(p, "1", "k2_kernel", "L2_exit", 3, 2, 4, 8, 28, 2)
    p.label("L1_exit")
    p("s_endpgm")
    return p.finalize(), dict(name="k1_kernel", grid=256, block=256, lds=147456+5120, vgpr=224, agpr=48)
```

```python
from asmlib import *
from layout import *
from k0 import prologue, wave_id
from k1 import mfma32
from k4 import mfma16

def shadow_setup(p, RAW):
    pass

import os
def gen_k2():
    FL = os.environ.get('K2F', 'a')
    p = Prog()
    SP = 8*KVC
    vK, vR, vV, vK0, vR0, vV0 = 4, 5, 6, 7, 8, 9
    M0r, M1r = 10, 11
    Q0, Q1, QRr = 16, 20, 24
    KR = [26, 28]; KM = [32, 36]; V = [40, 48]
    P = 56; NEG = 72; S = [104, 136]; O0, O1 = 168, 184
    TMP = 200
    RAW, MRG, COF, GV, VOF, VOB, VAD, VCO, CPY, VCP, VPF = 208, 216, 220, 224, 228, 229, 230, 231, 232, 236, 237
    p("s_cmp_ge_u32 s2, 256\ns_cbranch_scc1 L2_exit")
    prologue(p)
    wave_id(p, 3)
    p("s_and_b32 s28, s2, 7\ns_lshl_b32 s28, s28, 2\ns_bfe_u32 s29, s2, 0x20003\ns_add_u32 s28, s28, s29")
    p("s_lshr_b32 s29, s2, 5\ns_lshl_b32 s29, s29, 3\ns_and_b32 s30, s3, 3\ns_lshl_b32 s30, s30, 1\ns_add_u32 s29, s29, s30")
    p("s_lshr_b32 s30, s3, 2")
    p("v_and_b32 v1, 63, v0\nv_lshlrev_b32 v2, 4, v1\nv_lshlrev_b32 v3, 2, v1")
    p(f"s_mul_i32 s48, s28, {KVH}\ns_add_u32 s48, s48, {KV}")
    p("s_waitcnt lgkmcnt(0)")
    p(f"s_add_u32 s40, s{S_WS}, s48\ns_addc_u32 s41, s{S_WS+1}, 0\ns_mov_b32 s42, {KVH}\ns_mov_b32 s43, 0x20000")
    p("s_lshl_b32 m0, s3, 10\ns_movk_i32 s25, 8192")
    def kvdma():
        p.vmem("buffer_load_dwordx4 v2, s[40:43], m0 offen lds", 'D')
        p("s_add_u32 m0, m0, s25")
    for n in range(3): kvdma()
    srd(p, 32, S_WS, S_WS+1, QM, QM_SZ)
    srd(p, 36, S_WS, S_WS+1, QR, QR_SZ)
    srd(p, 44, S_WS, S_WS+1, OF, XT_SZ)
    p("s_lshl_b32 s48, s28, 16\ns_lshl_b32 s50, s29, 10\ns_add_u32 s48, s48, s50")
    p.vmem(f"buffer_load_dwordx4 {vr(Q0,4)}, v2, s[32:35], s48 offen", 'Q')
    p.vmem(f"buffer_load_dwordx4 {vr(Q1,4)}, v2, s[32:35], s48 offen offset:1024", 'Q')
    p("s_lshl_b32 s48, s28, 13\ns_lshl_b32 s50, s29, 7\ns_add_u32 s48, s48, s50")
    p.vmem(f"buffer_load_dword v{QRr}, v3, s[36:39], s48 offen", 'Q')
    for n in range(2): kvdma()
    srd(p, 60, S_WS, S_WS+1, XF, EXT + EXT_SZ - XF)
    srd(p, 96, S_WS, S_WS+1, MODB, MODB_SZ)
    p("v_and_b32 v12, 15, v1\nv_lshrrev_b32 v13, 4, v1")
    p(f"v_mov_b32 v{VCO}, 0x40000000\nv_mov_b32 v{VCP}, 0x40000000")
    p(f"s_mov_b32 s6, {T*D*2}\ns_mov_b32 s7, 0x20000")
    p("s_and_b32 s52, s3, 3")
    p("s_cmp_ge_u32 s2, 144\ns_cbranch_scc1 L2_jb")
    p("s_and_b32 s53, s2, 1\ns_lshr_b32 s54, s2, 1\ns_lshl_b32 s54, s54, 2\ns_add_u32 s54, s54, s52")
    p(f"s_cmp_eq_u32 s53, 0\ns_cselect_b32 s64, s{S_WG}, s{S_WU}\ns_cselect_b32 s65, s{S_WG+1}, s{S_WU+1}\ns_mov_b32 s66, {576*4608*2}\ns_mov_b32 s67, 0x20000")
    for j in range(8): p(f"s_mov_b32 s{8+j}, {j*9216}")
    p(f"v_mul_u32_u24 v{VOF}, {8*9216}, v13\nv_lshl_add_u32 v{VOF}, v12, 1, v{VOF}\nv_mov_b32 v{VOB}, v{VOF}")
    p(f"s_mul_i32 s16, s30, {288*9216}\ns_lshl_b32 s55, s54, 5\ns_add_u32 s16, s16, s55\ns_mov_b32 s17, {32*9216}\ns_mov_b32 s18, {32*9216}")
    p(f"s_mul_i32 s19, s54, 36864\ns_mul_i32 s55, s53, 18432\ns_add_u32 s19, s19, s55\ns_mul_i32 s55, s30, 9216\ns_add_u32 s19, s19, s55\ns_add_u32 s19, s19, {W1-XF}")
    p("s_mul_i32 s20, s30, 576")
    p(f"s_lshl_b32 s21, s54, 10\ns_lshl_b32 s55, s53, 9\ns_add_u32 s21, s21, s55\ns_lshl_b32 s55, s30, 8\ns_add_u32 s21, s21, s55\ns_add_u32 s21, s21, {EXT-XF}")
    p(f"v_mul_u32_u24 v14, 1152, v12\nv_lshl_add_u32 v14, v13, 4, v14\nv_cmp_gt_u32 vcc, 2, v12\nv_cndmask_b32 v{VCO}, v{VCO}, v14, vcc")
    p(f"v_and_b32 v14, 31, v1\nv_mul_u32_u24 v{VPF}, 9216, v14\ns_add_u32 s23, s16, {2*32*9216}\ns_mov_b32 s24, {32*9216}")
    p("s_mov_b32 s31, 0\ns_branch L2_jdone")
    p.label("L2_jb")
    p("s_cmp_ge_u32 s2, 216\ns_cbranch_scc1 L2_jd")
    srd(p, 64, S_WD, S_WD+1, 0, 4608*576*2)
    p("s_sub_u32 s53, s2, 144\ns_lshl_b32 s53, s53, 1\ns_add_u32 s53, s53, s30")
    p("s_mul_i32 s54, s53, 1821\ns_lshr_b32 s54, s54, 16\ns_mul_i32 s55, s54, 36\ns_sub_u32 s55, s53, s55\ns_lshl_b32 s54, s54, 2")
    p("s_mul_i32 s56, s55, 9363\ns_lshr_b32 s56, s56, 16\ns_mul_i32 s57, s56, 7\ns_sub_u32 s57, s55, s57")
    p("s_sub_u32 s58, s55, 28\ns_lshr_b32 s58, s58, 1\ns_and_b32 s59, s55, 1\ns_mul_i32 s59, s59, 144\ns_add_u32 s59, s59, 112")
    p("s_lshl_b32 s22, s57, 5\ns_add_u32 s22, s22, 16\ns_add_u32 s23, s22, 48\ns_cmp_ge_u32 s57, 3\ns_cselect_b32 s22, s23, s22")
    p("s_cmp_eq_u32 s57, 6\ns_cselect_b32 s22, 0, s22\ns_cselect_b32 s57, 9, 1")
    p("s_cmp_ge_u32 s55, 28\ns_cselect_b32 s56, s58, s56\ns_cselect_b32 s22, s59, s22\ns_cselect_b32 s57, 1, s57")
    p(f"s_add_u32 s54, s54, s56\ns_mov_b32 s56, s22\ns_mul_i32 s57, s57, {16*1152}")
    p("s_mul_i32 s54, s54, 288\ns_add_u32 s54, s54, s56\ns_mul_i32 s16, s54, 1152\ns_mul_i32 s55, s52, 288\ns_add_u32 s16, s16, s55")
    for j in range(4): p(f"s_mov_b32 s{8+j}, {j*1152}\ns_add_u32 s{12+j}, s57, {j*1152}")
    p(f"v_mul_u32_u24 v14, {4*1152}, v13\nv_lshl_add_u32 v{VOB}, v12, 1, v14")
    p(f"v_lshrrev_b32 v15, 2, v12\nv_lshlrev_b32 v15, 3, v15\nv_and_b32 v12, 3, v12\nv_add_u32 v15, v15, v12\nv_lshl_add_u32 v{VOF}, v15, 1, v14")
    p("s_mov_b32 s17, 8\ns_mov_b32 s18, 56")
    p(f"s_mul_i32 s19, s52, {144*9216}\ns_mul_i32 s55, s53, 9216\ns_add_u32 s19, s19, s55\ns_add_u32 s19, s19, {W2-XF}")
    p(f"v_and_b32 v14, 15, v1\nv_mul_u32_u24 v{VPF}, 1152, v14\nv_bfe_u32 v14, v1, 4, 1\nv_mul_lo_u32 v14, v14, s57\nv_add_u32 v{VPF}, v{VPF}, v14\nv_lshrrev_b32 v14, 5, v1\nv_lshl_add_u32 v{VPF}, v14, 7, v{VPF}\ns_add_u32 s23, s16, 64\ns_mov_b32 s24, 0x40000000")
    p("s_mov_b32 s20, 0\ns_mov_b32 s21, 0\ns_mov_b32 s31, 1\ns_branch L2_jdone")
    p.label("L2_jd")
    srd(p, 64, S_X, S_X+1, 0, 0)
    for j in range(8): p(f"s_mov_b32 s{8+j}, 0")
    p("s_sub_u32 s53, s2, 216\ns_lshl_b32 s53, s53, 1\ns_add_u32 s53, s53, s30")
    p(f"v_and_b32 v12, 31, v1\nv_mul_u32_u24 v12, 1152, v12\nv_lshrrev_b32 v13, 5, v1\nv_lshl_add_u32 v{VCP}, v13, 4, v12\nv_mov_b32 v{VOF}, 0\nv_mov_b32 v{VOB}, 0")
    p("s_mul_i32 s16, s53, 36864\ns_mul_i32 s55, s52, 288\ns_add_u32 s16, s16, s55\ns_mov_b32 s17, 32\ns_mov_b32 s18, 32")
    p("s_mul_i32 s19, s53, 36864\ns_mul_i32 s55, s52, 9216\ns_add_u32 s19, s19, s55")
    p(f"v_mov_b32 v{VPF}, 0\ns_mov_b32 s23, 0\ns_mov_b32 s24, 0")
    p("s_mov_b32 s20, 0\ns_mov_b32 s21, 0\ns_mov_b32 s31, 2\ns_cmp_ge_u32 s2, 248\ns_cselect_b32 s19, 0x40000000, s19\ns_cselect_b32 s6, 0, s6")
    p.label("L2_jdone")
    def bg_issue_ops():
        L = [[f"v_add_u32 v{VAD}, s16, v{VOF}", f"buffer_load_short_d16 v{RAW}, v{VAD}, s[64:67], s8 offen"]]
        for j in range(1, 8):
            L.append([f"buffer_load_short_d16{'_hi' if j&1 else ''} v{RAW+j}, v{VAD}, s[64:67], s{8+j} offen"])
        L.append([f"buffer_load_dwordx4 {vr(COF,4)}, v{VCO}, s[96:99], s20 offen", "s_add_u32 s20, s20, 64"])
        L.append([f"buffer_load_dwordx4 {vr(CPY,4)}, v{VCP}, s[4:7], s16 offen", "s_add_u32 s16, s16, s17", "s_mov_b32 s22, s17", "s_mov_b32 s17, s18", "s_mov_b32 s18, s22"])
        return L
    def bg_issue():
        for g in bg_issue_ops():
            for x in g: p(x)
    def bg_finish():
        for d in range(4): p(f"v_or3_b32 v{MRG+d}, v{RAW+2*d}, v{RAW+2*d+1}, v{CPY+d}")
        p(f"buffer_store_dwordx4 {vr(MRG,4)}, v2, s[60:63], s19 offen sc1")
        p("s_add_u32 s19, s19, 1024")
        p(mfma16(vr(GV,4), vr(COF,4), vr(MRG,4), vr(GV,4)))
    bg_issue()
    for i in range(4): p(f"v_mov_b32 v{GV+i}, 0")
    p(f"s_lshl_b32 s50, s30, 12\nv_add_u32 v{vK0}, s50, v2")
    p(f"v_and_b32 v12, 31, v1\nv_lshlrev_b32 v13, 2, v12\ns_lshl_b32 s50, s30, 9\ns_add_u32 s50, s50, 8192\nv_add_u32 v{vR0}, s50, v13")
    p("v_cmp_eq_u32 vcc, 22, v12\nv_min_u32 v12, 19, v12\nv_cndmask_b32 v12, v12, 18, vcc".replace("v_cndmask_b32 v12, v12, 18, vcc", "v_mov_b32 v14, 18\nv_cndmask_b32 v12, v12, v14, vcc"))
    p(f"v_lshlrev_b32 v12, 4, v12\nv_lshrrev_b32 v14, 5, v1\nv_mul_u32_u24 v14, 320, v14\nv_add_u32 v12, v12, v14")
    p(f"s_mul_i32 s50, s30, {8*640}\ns_add_u32 s50, s50, 9216\nv_add_u32 v{vV0}, s50, v12")
    p(f"v_mov_b32 v{QRr+1}, 0\nv_mov_b32 v{KR[0]+1}, 0\nv_mov_b32 v{KR[1]+1}, 0")
    p(f"v_mov_b32 v14, {SP}\nv_mov_b32 v15, 0")
    p("ds_write_b32 v14, v15")
    p("s_mov_b32 s51, 0")
    def zero_state():
        for i in range(32): p(f"v_mov_b32 v{O0+i}, 0")
        for i in range(4): p(f"v_mov_b32 v{P+12+i}, 0\nv_mov_b32 v{V[1]+4+i}, 0")
        p(f"v_mov_b32 v{vK}, v{vK0}\nv_mov_b32 v{vR}, v{vR0}\nv_mov_b32 v{vV}, v{vV0}")
    zero_state()
    mark(p, 0)
    p("s_waitcnt vmcnt(12)")
    p.vm = []
    p("s_waitcnt lgkmcnt(0)\ns_barrier")
    mark(p, 1)
    def mf2b(d, kr, c): return f"v_mfma_f32_32x32x4_2b_bf16 {vr(d,32)}, {vr(kr,2)}, {vr(QRr,2)}, {c}"
    def qk(d, km, q): return mfma32(vr(d,16), vr(km,4), vr(q,4), vr(d,16))
    def rowmax(dst, s, first):
        if first:
            p(f"v_max3_f32 v{dst}, v{s}, v{s+1}, v{s+2}"); rest = list(range(3, 16))
            p(f"v_max_f32 v{dst}, v{dst}, v{s+15}"); rest = rest[:-1]
        else: rest = list(range(16))
        for i in range(0, len(rest), 2): p(f"v_max3_f32 v{dst}, v{dst}, v{s+rest[i]}, v{s+rest[i+1]}")
    def halfmax(r):
        p(f"v_mov_b32 v{TMP}, v{r}\nv_permlane32_swap_b32 v{TMP}, v{r}\nv_max_f32 v{r}, v{r}, v{TMP}")
    def rdK(n):
        b = n & 1; c = KVC if n >= 4 else 0; j = n & 3
        p(f"ds_read_b32 v{KR[b]}, v{vR} offset:{c+128*j}")
        p(f"ds_read_b128 {vr(KM[b],4)}, v{vK} offset:{c+1024*j}")
    def rdV(n):
        b = n & 1; c = KVC if n >= 4 else 0; j = n & 3
        p(f"ds_read_b128 {vr(V[b],4)}, v{vV} offset:{c+1280*j}")
        p(f"ds_read_b128 {vr(V[b]+4,4)}, v{vV} offset:{c+1280*j+640}")
    p(f"ds_read_b128 {vr(KM[1],4)}, v2\nds_read_b32 v{KR[1]}, v13 offset:8192\ns_waitcnt lgkmcnt(0)")
    p(mf2b(S[0], KR[1], "0")); p(qk(S[0], KM[1], Q0)); p(qk(S[0]+16, KM[1], Q1))
    rowmax(M0r, S[0], True); rowmax(M1r, S[0]+16, True)
    halfmax(M0r); halfmax(M1r)
    p.label("L2_start")
    rdK(0); rdK(1); rdV(0)
    for i in range(16): p(f"v_sub_f32 v{NEG+i}, 0, v{M0r}\nv_sub_f32 v{NEG+16+i}, 0, v{M1r}")
    p("s_waitcnt lgkmcnt(0)")
    p(mf2b(S[0], KR[0], vr(NEG,32))); p(qk(S[0], KM[0], Q0)); p(qk(S[0]+16, KM[0], Q1))
    mark(p, 2)
    p("s_mov_b32 s52, 0\ns_setprio 2\ns_nop 8")
    p(".p2align 3")
    p.label("L2_loop")
    def pv(o, v, pp): return mfma32(vr(o,16), vr(v,4), vr(pp,4), vr(o,16))
    bgq = []
    def pf_ops():
        return [f"buffer_load_dword v{VPF+1}, v{VPF}, s[64:67], s23 offen", "s_add_u32 s23, s23, s24"]
    def kv_ops(): return ["buffer_load_dwordx4 v2, s[40:43], m0 offen lds", "s_add_u32 m0, m0, s25"]
    bgq[:] = [kv_ops(), kv_ops(), kv_ops()] + ([pf_ops()] if 'f' in FL else [])
    for j in range(4):
        b = j & 1; sc = S[b]; sn = S[b^1]
        def half(k):
            for e in range(4): p(f"v_exp_f32 v{sc+4*k+e}, v{sc+4*k+e}")
            for c in range(2): p(f"v_cvt_pk_bf16_f32 v{P+2*k+c}, v{sc+4*k+2*c}, v{sc+4*k+2*c+1}")
        def bg():
            if bgq:
                for x in bgq.pop(0): p(x)
        c4 = lambda n: KVC if n >= 4 else 0
        p("s_waitcnt lgkmcnt(0)")
        p(mf2b(sn, KR[b^1], vr(NEG,32)))
        half(0); half(1)
        if j == 2:
            p(f"s_waitcnt vmcnt({1 if 'f' in FL else 0})\ns_barrier\ns_setprio 3")
            if 's' not in FL:
                bg_finish()
                p(f"s_cmp_lg_u32 s52, 7\ns_cbranch_scc1 L2_nosw\nv_mov_b32 v{VOF}, v{VOB}")
                p.label("L2_nosw")
                bgq[:] = bg_issue_ops()
        else:
            p(f"s_setprio {(1,0,3,2)[j]}")
            bg()
        def pt(m, extra):
            if 'a' in FL: p(m)
            bg()
            if extra: p(extra)
            if 'a' not in FL: p(m)
        p(pv(O1, V[b^1]+4, P+12))
        half(2)
        pt(pv(O0, V[b], P), f"ds_read_b128 {vr(V[b^1],4)}, v{vV} offset:{c4(j+1)+1280*((j+1)&3)}")
        half(3)
        pt(qk(sn, KM[b^1], Q0), f"ds_read_b128 {vr(V[b^1]+4,4)}, v{vV} offset:{c4(j+1)+1280*((j+1)&3)+640}")
        half(4)
        pt(pv(O0, V[b]+4, P+4), f"ds_read_b32 v{KR[b]}, v{vR} offset:{c4(j+2)+128*((j+2)&3)}")
        half(5)
        pt(qk(sn+16, KM[b^1], Q1), f"ds_read_b128 {vr(KM[b],4)}, v{vK} offset:{c4(j+2)+1024*((j+2)&3)}")
        half(6)
        if j == 3:
            p(f"v_add_u32 v{vK}, {KVC}, v{vK}\nv_add_u32 v{vR}, {KVC}, v{vR}\nv_add_u32 v{vV}, {KVC}, v{vV}")
            p("s_add_u32 s52, s52, 1\ns_cmp_lt_u32 s52, 8")
            p(pv(O1, V[b], P+8))
        else: pt(pv(O1, V[b], P+8), None)
        half(7)
        if j == 3: assert not bgq
        if j == -1: pass
        if j == 0: pass
        if j == 3: pass
        if j == 0 or j == 1: pass
    assert not bgq
    p("s_cbranch_scc1 L2_loop")
    mark(p, 3)
    p(pv(O1, V[1]+4, P+12))
    p.vm = []
    p("s_waitcnt vmcnt(0)")
    bg_finish()
    p("s_cmp_lg_u32 s31, 0\ns_cbranch_scc1 L2_noext")
    p("s_nop 7")
    p(f"v_cvt_pk_bf16_f32 v{RAW}, v{GV}, v{GV+1}")
    p(f"v_lshlrev_b32 v{RAW+1}, 16, v{RAW}\nv_and_b32 v{RAW+2}, 0xffff0000, v{RAW}")
    p(f"v_sub_f32 v{GV}, v{GV}, v{RAW+1}\nv_sub_f32 v{GV+1}, v{GV+1}, v{RAW+2}")
    p(f"v_cvt_pk_bf16_f32 v{MRG}, v{RAW+1}, v{GV}\nv_mov_b32 v{MRG+1}, v{RAW}\nv_cvt_pk_bf16_f32 v{MRG+2}, v{GV+1}, v{RAW+2}\nv_mov_b32 v{MRG+3}, 0")
    p("s_mov_b64 s[56:57], exec\ns_mov_b64 exec, 0xffff")
    p(f"buffer_store_dwordx4 {vr(MRG,4)}, v2, s[60:63], s21 offen")
    p("s_mov_b64 exec, s[56:57]")
    p.label("L2_noext")
    p("s_mov_b32 s31, 3\ns_mov_b32 s19, 0x40000000\ns_mov_b32 s66, 0\ns_mov_b32 s6, 0")
    code_prefetch(p, "2", "kf_kernel", "LF_exit", 3, 3, RAW, RAW+4, 8, 2)
    p("s_waitcnt lgkmcnt(0)\ns_nop 4")
    p(f"v_add_f32 v{TMP}, abs(v{O0}), abs(v{O0+1})")
    for i in range(2, 10): p(f"v_add_f32 v{TMP}, v{TMP}, abs(v{O0+i})")
    for i in range(10): p(f"v_add_f32 v{TMP}, v{TMP}, abs(v{O1+i})")
    p(f"v_add_f32 v{TMP+1}, abs(v{O0+10}), abs(v{O1+10})")
    p(f"s_mov_b32 s53, {f2h(2.0**126)}\ns_mov_b32 s54, {f2h(2.0**64)}")
    p(f"v_cmp_nge_f32 vcc, s53, v{TMP}")
    p(f"v_cmp_nge_f32 s[56:57], s54, v{TMP+1}")
    p("s_or_b64 vcc, vcc, s[56:57]")
    p(f"v_mov_b32 v14, {SP}\nv_mov_b32 v15, 1")
    p("s_cbranch_vccz L2_good")
    p("ds_write_b32 v14, v15")
    p.label("L2_good")
    p("s_waitcnt lgkmcnt(0)\ns_barrier")
    p("ds_read_b32 v15, v14\ns_waitcnt lgkmcnt(0)\nv_readfirstlane_b32 s53, v15")
    p("s_andn2_b32 s53, s53, s51\ns_cmp_lg_u32 s53, 0\ns_cbranch_scc1 L2_slow")
    mark(p, 4)
    p("s_cmp_eq_u32 s30, 0\ns_cbranch_scc1 L2_noswap")
    for i in range(12): p(f"v_swap_b32 v{O0+i}, v{O1+i}")
    p.label("L2_noswap")
    p("s_mul_i32 s53, s3, 3072\nv_add_u32 v14, s53, v2\ns_xor_b32 s54, s3, 4\ns_mul_i32 s54, s54, 3072\nv_add_u32 v15, s54, v2")
    for i in range(3): p(f"ds_write_b128 v14, {vr(O1+4*i,4)} offset:{1024*i}")
    p("s_waitcnt lgkmcnt(0)\ns_barrier")
    for i in range(3): p(f"ds_read_b128 {vr(O1+4*i,4)}, v15 offset:{1024*i}")
    p("s_add_u32 s53, s29, s30\ns_mul_i32 s53, s53, 36864\ns_lshl_b32 s54, s28, 10\ns_add_u32 s54, s54, s53")
    p("s_lshr_b32 s55, s28, 3\ns_add_u32 s55, s55, 32\ns_lshl_b32 s55, s55, 10\ns_add_u32 s55, s55, s53")
    p("s_bfe_u32 s56, s28, 0x10002\ns_lshl_b32 s56, s56, 9\ns_add_u32 s55, s55, s56\ns_and_b32 s56, s28, 3\ns_lshl_b32 s56, s56, 2\ns_add_u32 s55, s55, s56")
    p("s_waitcnt lgkmcnt(0)")
    for i in range(11): p(f"v_add_f32 v{O0+i}, v{O0+i}, v{O1+i}")
    p(f"v_rcp_f32 v{O0+10}, v{O0+10}")
    for i in range(10): p(f"v_mul_f32 v{O0+i}, v{O0+i}, v{O0+10}")
    for d in range(5): p(f"v_cvt_pk_bf16_f32 v{P+d}, v{O0+2*d}, v{O0+2*d+1}")
    p(f"buffer_store_dwordx4 {vr(P,4)}, v2, s[44:47], s54 offen")
    p("s_mov_b32 exec_hi, 0")
    p(f"buffer_store_dword v{P+4}, v2, s[44:47], s55 offen")
    p("s_endpgm")
    p.label("L2_slow")
    p(f"v_mov_b32 v{vK}, v{vK0}\nv_mov_b32 v{vR}, v{vR0}\nv_mov_b32 v{M0r}, 0xff800000\nv_mov_b32 v{M1r}, 0xff800000\ns_mov_b32 s52, 0")
    p.label("L2_slow_loop")
    for j in range(4):
        p(f"ds_read_b32 v{KR[0]}, v{vR} offset:{128*j}\nds_read_b128 {vr(KM[0],4)}, v{vK} offset:{1024*j}\ns_waitcnt lgkmcnt(0)")
        p(mf2b(S[0], KR[0], "0")); p(qk(S[0], KM[0], Q0)); p(qk(S[0]+16, KM[0], Q1))
        rowmax(M0r, S[0], False); rowmax(M1r, S[0]+16, False)
    p(f"v_add_u32 v{vK}, {KVC}, v{vK}\nv_add_u32 v{vR}, {KVC}, v{vR}")
    p("s_add_u32 s52, s52, 1\ns_cmp_lt_u32 s52, 8\ns_cbranch_scc1 L2_slow_loop")
    halfmax(M0r); halfmax(M1r)
    p(f"s_lshl_b32 s53, s3, 9\ns_add_u32 s53, s53, {SP+64}\nv_lshlrev_b32 v14, 3, v1\nv_add_u32 v15, s53, v14")
    p(f"ds_write_b64 v15, v[{M0r}:{M1r}]")
    p(f"s_xor_b32 s53, s3, 4\ns_lshl_b32 s53, s53, 9\ns_add_u32 s53, s53, {SP+64}\nv_add_u32 v15, s53, v14")
    p(f"s_waitcnt lgkmcnt(0)\ns_barrier\nds_read_b64 v[{TMP}:{TMP+1}], v15\ns_waitcnt lgkmcnt(0)")
    p(f"v_max_f32 v{M0r}, v{M0r}, v{TMP}\nv_max_f32 v{M1r}, v{M1r}, v{TMP+1}")
    zero_state()
    p("s_mov_b32 s51, 1\ns_mov_b32 s25, 0\ns_mov_b32 m0, 0x28000\ns_branch L2_start")
    p.label("L2_exit")
    p("s_endpgm")
    return p.finalize(), dict(name="k2_kernel", grid=256, block=512, lds=163840, vgpr=240, agpr=0)
```

```python
from asmlib import *
from layout import *
from k0 import prologue, wave_id
from k1 import mfma32
from k4 import mfma16, Sched
import math, os

SLOT = 36864
FA, FB, FB2 = 32768, 65536, 81920

def poll(p, name, vreg, voff, s_off, expect, s_cnt=10, s_val=11):
    p(f"s_mov_b32 s{s_cnt}, 0")
    p.label(f"{name}_poll")
    p(f"v_mov_b32 v{vreg}, 0")
    p(f"buffer_atomic_add v{vreg}, v{voff}, s[12:15], s{s_off} offen sc0 sc1")
    p(f"s_add_u32 s{s_cnt}, s{s_cnt}, 1\ns_waitcnt vmcnt(0)")
    p(f"v_readfirstlane_b32 s{s_val}, v{vreg}")
    p(f"s_cmp_ge_u32 s{s_val}, {expect}\ns_cbranch_scc1 {name}_go")
    p(f"s_cmp_lt_u32 s{s_cnt}, 0x20000\ns_cbranch_scc1 {name}_poll")
    p.label(f"{name}_go")

def signal(p, s_off, vone, voff, wait=True):
    if wait: p("s_waitcnt vmcnt(0)")
    p(f"buffer_atomic_add v{vone}, v{voff}, s[12:15], s{s_off} offen sc1")

def gen_kf():
    PM = os.environ.get('PM', '')
    def mk(ph, i):
        if ph == PM: mark(p, i)
    p = Prog(); S = Sched(p); emit = S.emit
    p("s_cmp_ge_u32 s2, 256\ns_cbranch_scc1 LF_exit")
    prologue(p)
    wave_id(p, 3)
    p("v_and_b32 v1, 63, v0\nv_lshlrev_b32 v2, 4, v1\nv_mov_b32 v14, 1\nv_lshlrev_b32 v15, 24, v1")
    p("s_bfe_u32 s29, s2, 0x20001\ns_lshl_b32 s29, s29, 3\ns_lshr_b32 s30, s2, 5\ns_add_u32 s31, s29, s30")
    p(f"s_mul_i32 s48, s31, {9*SLOT}\ns_add_u32 s48, s48, {W1}")
    p(f"s_mul_i32 s50, s3, 9216\ns_mov_b32 s51, s50\ns_add_u32 s52, s50, {2*SLOT}")
    def dma_ops(n):
        L = []
        for k, cnt in ((0, 4), (1, 4), (2, 1)):
            L += [f"s_add_u32 m0, s52, {4096*k}"] + ([f"s_add_u32 s53, s51, {4096*k}"] if k else [])
            L += [('vm', f"buffer_load_dwordx4 v2, s[36:39], s{53 if k else 51} offen offset:{1024*i} lds", f'W{n}') for i in range(cnt)]
        L += [[f"s_add_u32 s51, s51, {SLOT}", f"s_add_u32 s52, s52, {SLOT}", f"s_cmp_ge_u32 s52, {4*SLOT}", "s_cselect_b32 s52, s50, s52"]]
        return L
    def flat(L):
        o = []
        for x in L: o += x if isinstance(x, list) else [x]
        return o
    p("s_lshr_b32 s29, s2, 3\ns_cmp_ge_u32 s29, 9\ns_cselect_b32 s30, 1, 0\ns_cselect_b32 s28, 9, 0\ns_sub_u32 s29, s29, s28")
    p("s_and_b32 s28, s2, 7\ns_lshl_b32 s28, s28, 1\ns_add_u32 s28, s28, s30")
    p("s_waitcnt lgkmcnt(0)")
    p(f"s_add_u32 s36, s{S_WS}, s48\ns_addc_u32 s37, s{S_WS+1}, 0\ns_mov_b32 s38, {9*SLOT}\ns_mov_b32 s39, 0x20000")
    srd(p, 12, S_WS, S_WS+1, FLAGS, FLAGS_SZ)
    p("s_cmp_lt_u32 s2, 144\ns_cbranch_scc1 LF_p3")
    for x in flat(dma_ops(0) + dma_ops(1)): emit(x)
    p("s_branch LF_p4")
    p.vm = []
    p.label("LF_p3")
    ACT, ACC3, XR, GA, TMP3, CB = 16, 160, 192, 208, 16, 48
    CO = 4*SLOT
    p("s_lshl_b32 s30, s28, 2\ns_add_u32 s30, s30, s3")
    p("v_and_b32 v8, 15, v1\nv_lshlrev_b32 v8, 4, v8\nv_bfe_u32 v9, v1, 4, 1\nv_mul_u32_u24 v9, 4608, v9\nv_add_u32 v8, v8, v9")
    p("s_mul_i32 s48, s30, 36864")
    p("s_mul_i32 s49, s29, 73728\ns_mul_i32 s54, s3, 3072\ns_add_u32 s49, s49, s54")
    p("s_lshl_b32 s17, s29, 12\ns_add_u32 s17, s17, s48")
    p(f"s_lshl_b32 s19, s29, 8\ns_add_u32 s19, s19, {2*2304}")
    mk('3', 0)
    srd(p, 64, S_WS, S_WS+1, WOS, WOS_SZ)
    srd(p, 32, S_WS, S_WS+1, OF, XT_SZ)
    srd(p, 40, S_WS, S_WS+1, MOD, MOD_SZ)
    srd(p, 44, S_WS, S_WS+1, XF, XT_SZ)
    vmq = [('vm', f"buffer_load_dwordx4 {vr(GA,4)}, v8, s[40:43], s19 offen", 'G')]
    for c in range(6):
        vmq += [f"s_add_u32 m0, s54, {c*12288}", f"s_add_u32 s55, s49, {c*12288}"]
        vmq += [('vm', f"buffer_load_dwordx4 v2, s[64:67], s55 offen offset:{1024*i} lds", f'V{c}') for i in range(3)]
        for s in range(6*c, 6*c+6):
            vmq.append(('vm', f"buffer_load_dwordx4 {vr(ACT+4*s,4)}, v2, s[32:35], s48 offen offset:{1024*(s%4)}", f'A{s}'))
            if s % 4 == 3: vmq.append("s_add_u32 s48, s48, 4096")
    vmq += [('vm', f"buffer_load_dwordx4 {vr(XR+4*i,4)}, v2, s[44:47], s17 offen offset:{1024*i}", 'X') for i in range(4)]
    def vm_next(n=1):
        while n > 0 and vmq:
            x = vmq.pop(0); emit(x)
            if isinstance(x, tuple): n -= 1
        if vmq and not any(isinstance(x, tuple) for x in vmq):
            while vmq: emit(vmq.pop(0))
    vm_next(6)
    srd(p, 56, S_WS, S_WS+1, X2, XT_SZ); vm_next(2)
    srd(p, 60, S_WS, S_WS+1, STATS, STATS_SZ); vm_next(2)
    srd(p, 8, S_WS, S_WS+1, YF, XT_SZ); vm_next(2)
    p(f"v_lshrrev_b32 v6, 5, v1\nv_lshlrev_b32 v7, 5, v6\nv_add_u32 v7, {CO}, v7\nv_add_u32 v5, {CO}, v2")
    p("v_bfe_u32 v12, v1, 4, 1\nv_mul_u32_u24 v12, 18432, v12\nv_lshl_add_u32 v12, v6, 8, v12\nv_and_b32 v13, 15, v1\nv_lshl_add_u32 v12, v13, 4, v12")
    vm_next(2)
    p("s_mul_i32 s16, s30, 36864\ns_lshl_b32 s18, s29, 11\ns_add_u32 s16, s16, s18\ns_mov_b32 s20, 0xffff0000")
    p("s_lshl_b32 s18, s29, 14\ns_lshl_b32 s21, s30, 8\ns_add_u32 s18, s18, s21\nv_lshlrev_b32 v13, 3, v1")
    p(f"s_lshr_b32 s21, s30, 1\ns_lshl_b32 s21, s21, 10\ns_add_u32 s21, s21, {FA}")
    vm_next(int(os.environ.get('P3PRE', '10')))
    p.wait(vm='G')
    p.lds(f"ds_write_b128 v5, {vr(GA,4)}")
    def rdW3(s): return [('lds', f"ds_read_b128 {ar(8*(s%3)+4*t,4)}, v{3 + ((s*2+t)*1024)//65536} offset:{((s*2+t)*1024)%65536}", f'w{s}') for t in range(2)]
    p("v_mov_b32 v3, v2\nv_add_u32 v4, 0x10000, v2")
    mk('3', 1)
    p.wait(vm='V0', lg='all'); p("s_barrier")
    mk('3', 2)
    for x in rdW3(0) + rdW3(1): emit(x)
    late = False
    for s in range(36):
        p.wait(vm=f'A{s}', lg=f'w{s}')
        for t in range(2):
            acc = vr(ACC3+16*t, 16)
            p(mfma32(acc, ar(8*(s%3)+4*t, 4), vr(ACT+4*s, 4), acc if s else "0"))
            if t == 0:
                if s + 2 < 36:
                    if (s+2) % 6 == 0: p.wait(vm=f'V{(s+2)//6}'); p("s_barrier")
                    for x in rdW3(s+2): emit(x)
                vm_next()
            elif s & 1 and not late: vm_next()
        if not vmq and not late:
            late = True; vmq += flat(dma_ops(0) + dma_ops(1))
        if s == 30:
            for i in range(8): p.lds(f"ds_read_b128 {vr(GA+4*i,4)}, v7 offset:{64*(i>>1)+16*(i&1)}", 'g')
    mk('3', 3)
    for i in range(8): p.lds(f"ds_read_b128 {vr(CB+4*i,4)}, v7 offset:{256+64*(i>>1)+16*(i&1)}", 'c')
    p.wait(vm='X')
    for i in range(16):
        p(f"v_lshlrev_b32 v{TMP3+2*i}, 16, v{XR+i}\nv_and_b32 v{TMP3+2*i+1}, s20, v{XR+i}")
        if i % 4 == 3: vm_next()
    p.wait(lg='g')
    for i in range(16):
        p(f"v_pk_fma_f32 {vr(TMP3+2*i,2)}, {vr(GA+2*i,2)}, {vr(ACC3+2*i,2)}, {vr(TMP3+2*i,2)}")
        if i % 8 == 7: vm_next()
    p.wait(lg='c')
    for i in range(16):
        p(f"v_pk_mul_f32 {vr(CB+2*i,2)}, {vr(CB+2*i,2)}, {vr(TMP3+2*i,2)}")
        if i % 8 == 7: vm_next()
    for i in range(16):
        p(f"v_cvt_pk_bf16_f32 v{GA+i}, v{CB+2*i}, v{CB+2*i+1}")
        if i % 4 == 3: p(f"buffer_store_dwordx4 {vr(GA+i-3,4)}, v12, s[8:11], s16 offen offset:{128*(i-3)} sc1")
    for i in range(16):
        p(f"v_cvt_pk_bf16_f32 v{XR+i}, v{TMP3+2*i}, v{TMP3+2*i+1}")
        if i % 4 == 3: p(f"buffer_store_dwordx4 {vr(XR+i-3,4)}, v12, s[56:59], s16 offen offset:{128*(i-3)} sc1")
    p(f"v_pk_add_f32 v[8:9], {vr(TMP3,2)}, {vr(TMP3+2,2)}\nv_pk_add_f32 v[10:11], {vr(TMP3+4,2)}, {vr(TMP3+6,2)}")
    for i in range(4, 16): p(f"v_pk_add_f32 v[{8+2*(i&1)}:{9+2*(i&1)}], v[{8+2*(i&1)}:{9+2*(i&1)}], {vr(TMP3+2*i,2)}")
    p("v_pk_add_f32 v[8:9], v[8:9], v[10:11]\nv_add_f32 v8, v8, v9")
    def xsum(r): p(f"v_mov_b32 v10, v{r}\nv_permlane32_swap_b32 v10, v{r}\nv_add_f32 v{r}, v{r}, v10")
    xsum(8)
    p(f"v_mul_f32 v8, {f2h(1/64)}, v8")
    for i in range(16): p(f"v_pk_add_f32 {vr(CB+2*i,2)}, {vr(TMP3+2*i,2)}, v[8:9] op_sel_hi:[1,0] neg_lo:[0,1] neg_hi:[0,1]")
    p(f"v_pk_mul_f32 v[10:11], {vr(CB,2)}, {vr(CB,2)}\nv_pk_mul_f32 v[4:5], {vr(CB+2,2)}, {vr(CB+2,2)}")
    for i in range(2, 16):
        r = "v[10:11]" if i % 2 == 0 else "v[4:5]"
        p(f"v_pk_fma_f32 {r}, {vr(CB+2*i,2)}, {vr(CB+2*i,2)}, {r}")
    p("v_pk_add_f32 v[4:5], v[4:5], v[10:11]\nv_add_f32 v9, v4, v5"); xsum(9)
    p("s_mov_b32 exec_hi, 0")
    p("buffer_store_dwordx2 v[8:9], v13, s[60:63], s18 offen sc1")
    p("s_mov_b32 exec_hi, -1")
    vm_next(99)
    p("v_lshlrev_b32 v10, 7, v1\nv_cmp_gt_u32 vcc, 8, v1\nv_mov_b32 v11, 0x40000000\nv_cndmask_b32 v10, v11, v10, vcc")
    mk('3', 4)
    signal(p, 21, 14, 10)
    mk('3', 5)
    p.vm = []; p.lg = []
    p.label("LF_p4")
    mk('', 0)
    ACC, PK, TMP, C1T, C2T, KI, EB, EA, HV = [16, 48], 80, 96, 112, 116, 120, 124, [140, 148], 156
    WR = 188
    def hreg(tt, s):
        i = tt*18 + s
        return vr(HV + 4*i, 4) if i < 25 else ar(4*(i-25), 4)
    p("s_and_b32 s28, s2, 1\ns_lshl_b32 s28, s28, 2\ns_bfe_u32 s29, s2, 0x20003\ns_add_u32 s28, s28, s29")
    p("s_mov_b32 s29, s31\ns_lshl_b32 s30, s28, 2\ns_add_u32 s30, s30, s3")
    p(f"v_add_u32 v3, {2*SLOT}, v2\nv_add_u32 v5, {3*SLOT}, v2\nv_lshlrev_b32 v8, 3, v1\nv_lshlrev_b32 v9, 2, v1")
    p("v_cmp_gt_u32 vcc, 32, v1\nv_mov_b32 v6, 0x40000000\nv_cndmask_b32 v4, v6, v2, vcc")
    srd(p, 32, S_WS, S_WS+1, YF, XT_SZ)
    p(f"s_mul_i32 s48, s29, {9*1024}\ns_add_u32 s48, s48, {EXT}")
    p(f"s_add_u32 s40, s{S_WS}, s48\ns_addc_u32 s41, s{S_WS+1}, 0\ns_mov_b32 s42, {9*1024}\ns_mov_b32 s43, 0x20000")
    srd(p, 44, S_WS, S_WS+1, STATS, STATS_SZ)
    srd(p, 56, S_WS, S_WS+1, AF, AF_SZ)
    p("s_mov_b32 s54, 0")
    def ext_ops(ps):
        return [('vm', f"buffer_load_dwordx4 {vr(EA[ps&1],4)}, v4, s[40:43], s54 offen", f'E{ps}'),
                ('vm', f"buffer_load_dwordx4 {vr(EA[ps&1]+4,4)}, v4, s[40:43], s54 offen offset:512", f'E{ps}'),
                "s_add_u32 s54, s54, 1024"]
    for x in ext_ops(0) + ext_ops(1): emit(x)
    p("s_mul_i32 s48, s30, 73728\ns_lshl_b32 s49, s30, 9")
    p("s_lshr_b32 s60, s29, 3\ns_mul_i32 s60, s60, 36\ns_and_b32 s61, s29, 7\ns_add_u32 s67, s60, s61\ns_add_u32 s67, s67, 28\ns_lshl_b32 s67, s67, 17")
    p("s_bfe_u32 s61, s29, 0x20001\ns_mul_i32 s61, s61, 7\ns_add_u32 s60, s60, s61\ns_and_b32 s61, s29, 1\ns_mul_i32 s62, s61, 3\ns_add_u32 s62, s62, s60\ns_lshl_b32 s62, s62, 17")
    p("s_lshl_b32 s63, s30, 12\ns_add_u32 s62, s62, s63\ns_add_u32 s67, s67, s63")
    p("s_add_u32 s60, s60, 6\ns_lshl_b32 s60, s60, 17\ns_add_u32 s60, s60, s63\ns_lshl_b32 s61, s61, 3\ns_add_u32 s60, s60, s61")
    p(f"s_lshl_b32 s17, s30, 3\ns_lshr_b32 s16, s29, 2\ns_add_u32 s17, s17, s16\ns_lshl_b32 s17, s17, 7\ns_add_u32 s17, s17, {FA}")
    p(f"s_lshl_b32 s18, s30, 2\ns_lshr_b32 s16, s29, 3\ns_add_u32 s18, s18, s16\ns_lshl_b32 s18, s18, 7\ns_add_u32 s18, s18, {FB}")
    p(f"s_lshr_b32 s64, s2, 6\ns_mul_i32 s64, s64, {144*9216}\ns_and_b32 s65, s2, 3\ns_mul_i32 s65, s65, {36*9216}\ns_add_u32 s64, s64, s65\ns_add_u32 s64, s64, {hex(W2)}")
    def rdWb(base, k, buf):
        g, m = k >> 1, k & 1
        return [('lds', f"ds_read_b128 {ar(WR+24*buf+4*l,4)}, v{base} offset:{(m*18+6*g+l)*1024}", 'w') for l in range(6)]
    p("s_waitcnt vmcnt(0)\ns_barrier"); p.vm = []
    for x in rdWb(3, 0, 0) + rdWb(3, 1, 1): emit(x)
    ST = ACC[1]
    poll(p, "LF_a", 10, 15, 17, 18)
    mk('', 1)
    mk('4', 0)
    for c in range(9):
        p.vmem(f"buffer_load_dwordx2 {vr(ST+2*c,2)}, v8, s[44:47], s49 offen sc1", 'S')
        if c < 8: p("s_add_u32 s49, s49, 16384")
    def act_ops(g, tt):
        L = [f"s_add_u32 s63, s48, {tt*18432+g*6144}"]
        for l in range(6):
            if l == 4: L.append("s_add_u32 s63, s63, 4096")
            L.append(('vm', f"buffer_load_dwordx4 {hreg(tt,6*g+l)}, v2, s[32:35], s63 offen offset:{1024*(l%4)} sc1", f'A{g}{tt}'))
        return L
    vmq[:] = []
    for g in range(3):
        for tt in range(4): vmq += act_ops(g, tt)
    vmq += flat(dma_ops(2)) + ext_ops(2) + flat(dma_ops(3))
    vm_next(15)
    class VP:
        def __init__(s2): s2.k = 0
        def __call__(s2, text):
            for ln in text.split("\n"):
                p0(ln); s2.k += 1
                if s2.k % 8 == 0: vm_next()
        def __getattr__(s2, a): return getattr(p0, a)
    p0 = p; p = VP()
    p.wait(vm='S')
    p(f"v_add_f32 v11, v{ST}, v{ST+2}")
    for c in range(2, 9): p(f"v_add_f32 v11, v11, v{ST+2*c}")
    p(f"v_mul_f32 v11, {f2h(-1/9)}, v11")
    p(f"v_add_f32 v12, v{ST+1}, v{ST+3}")
    for c in range(2, 9): p(f"v_add_f32 v12, v12, v{ST+2*c+1}")
    for c in range(9): p(f"v_add_f32 v{ST+2*c}, v{ST+2*c}, v11")
    p(f"v_mul_f32 v13, v{ST}, v{ST}")
    for c in range(1, 9): p(f"v_fmac_f32 v13, v{ST+2*c}, v{ST+2*c}")
    p(f"v_fmac_f32 v12, {f2h(64.0)}, v13")
    p(f"v_mov_b32 v13, {f2h(1e-5)}\nv_fmac_f32 v13, {f2h(1/576)}, v12")
    p("v_rsq_f32 v12, v13\nv_sqrt_f32 v7, v13")
    C1 = -2*math.sqrt(2/math.pi)*math.log2(math.e); C2 = C1*0.044715
    T0 = TMP
    p(f"v_mul_f32 v{T0}, {f2h(C1)}, v12\nv_mul_f32 v{T0+1}, v12, v12\nv_mul_f32 v{T0+1}, v{T0+1}, v12\nv_mul_f32 v{T0+1}, {f2h(C2)}, v{T0+1}")
    p(f"v_cvt_pk_bf16_f32 v{T0+2}, v11, v11\nv_cvt_pk_bf16_f32 v{T0+4}, v7, v7")
    p(f"v_and_b32 v{T0+5}, 0xffff0000, v{T0+2}\nv_and_b32 v{T0+6}, 0xffff0000, v{T0+4}")
    p(f"v_sub_f32 v11, v11, v{T0+5}\nv_sub_f32 v7, v7, v{T0+6}")
    p(f"v_cvt_pk_bf16_f32 v{T0+3}, v11, v{T0+6}\nv_cvt_pk_bf16_f32 v{T0+4}, v{T0+6}, v7")
    p("v_and_b32 v9, 15, v1\nv_lshlrev_b32 v9, 2, v9")
    p.wait(lg='w')
    for tt in range(4):
        if tt: p("v_add_u32 v9, 64, v9")
        for dst, src in ((C1T+tt, T0), (C2T+tt, T0+1), (KI+tt, 13), (EB+4*tt, T0+2), (EB+4*tt+1, T0+3), (EB+4*tt+2, T0+4)):
            p.lds(f"ds_bpermute_b32 v{dst}, v9, v{src}", 'B')
        p(f"v_mov_b32 v{EB+4*tt+3}, 0")
        if tt & 1: p.wait(lg='B')
    p = p0
    mk('4', 1)
    def gelu_ops(ps):
        a = ACC[ps & 1]; L = []
        for tt in range(4):
            g = [a+4*tt+e for e in range(4)]; u = [a+16+4*tt+e for e in range(4)]
            t = [TMP+8*(tt&1)+e for e in range(4)]; gu = [TMP+8*(tt&1)+4+e for e in range(4)]
            for e in range(4): L.append(f"v_mul_f32 v{t[e]}, v{g[e]}, v{g[e]}")
            for e in range(4): L.append(f"v_fma_f32 v{t[e]}, v{t[e]}, v{C2T+tt}, v{C1T+tt}")
            for e in range(4): L.append(f"v_mul_f32 v{t[e]}, v{t[e]}, v{g[e]}")
            for e in range(4): L.append(f"v_exp_f32 v{t[e]}, v{t[e]}")
            for e in range(4): L.append(f"v_mul_f32 v{gu[e]}, v{g[e]}, v{u[e]}")
            for e in range(4): L.append(f"v_fma_f32 v{t[e]}, v{t[e]}, v{KI+tt}, v{KI+tt}")
            for e in range(4): L.append(f"v_rcp_f32 v{t[e]}, v{t[e]}")
            for e in range(4): L.append(f"v_mul_f32 v{gu[e]}, v{gu[e]}, v{t[e]}")
            o = PK + 4*tt + (0 if ps & 1 else 2)
            for c in range(2): L.append(f"v_cvt_pk_bf16_f32 v{o+c}, v{gu[2*c]}, v{gu[2*c+1]}")
            if ps == 0: L.append(('vm', f"buffer_store_dwordx2 {vr(o,2)}, v2, s[56:59], s60 offen offset:{1024*tt} sc1", 'st'))
            elif not ps & 1: L.append(('vm', f"buffer_store_dwordx4 {vr(PK+4*tt,4)}, v2, s[56:59], s62 offen offset:{1024*tt} sc1", 'st'))
        if ps and not ps & 1: L.append("s_add_u32 s62, s62, 131072")
        return L
    def chain(ps, g, m, tt, buf):
        acc = vr(ACC[ps & 1] + 16*m + 4*tt, 4)
        ch = [mfma16(acc, vr(EA[ps&1]+4*m, 4), vr(EB+4*tt, 4), "0")] if g == 0 else []
        return ch + [mfma16(acc, ar(WR+24*buf+4*l, 4), hreg(tt, 6*g+l), acc) for l in range(6)]
    def run_vm(chains, every):
        cnt = 0
        for x in chains:
            p(x); cnt += 1
            if cnt % every == 0: vm_next()
    for g in range(3):
        for tt in range(4):
            p.wait(vm=f'A{g}{tt}', lg='w')
            run_vm(chain(0, g, 0, tt, 0) + chain(0, g, 1, tt, 1), 3)
        mk('4', 2+g)
        for x in rdWb(5, 2*g, 0) + rdWb(5, 2*g+1, 1): emit(x)
        if g < 2:
            vm_next(2)
            p.wait(lg='w')
            run_vm(sum([chain(1, g, 0, tt, 0) for tt in range(4)], []), 3)
            for x in rdWb(3, 2*g+2, 0): emit(x)
            run_vm(sum([chain(1, g, 1, tt, 1) for tt in range(4)], []), 3)
            for x in rdWb(3, 2*g+3, 1): emit(x)
    vm_next(99)
    mf = sum([chain(1, 2, 0, tt, 0) for tt in range(4)], []) + sum([chain(1, 2, 1, tt, 1) for tt in range(4)], [])
    must = {24: [('wait', dict(vm='W2')), "s_barrier"], 25: ["s_mov_b32 s55, 0", "v_mov_b32 v3, v2"]}
    for t_, x in enumerate(rdWb(3, 0, 0)): must.setdefault(26 + t_, []).append(x)
    S.cap = 3
    S.run(mf, {0: [('wait', dict(lg='w'))]}, must, gelu_ops(0), bgstart=0)
    S.cap = 2
    mk('4', 5)
    mk('', 2)
    def spread(must, ops, lo, hi):
        groups, cur = [], []
        for x in ops:
            cur.append(x)
            if isinstance(x, tuple): groups.append(cur); cur = []
        tail = cur
        for k, g in enumerate(groups):
            i = lo + (hi - lo) * k // len(groups) + len(g) - 1
            for z, x in enumerate(g): must.setdefault(i - len(g) + 1 + z, []).append(x)
        for z, x in enumerate(tail): must.setdefault(hi + z, []).append(x)
    def do_pass(ps):
        mf, pre, must = [], {}, {}
        starts = []
        for k in range(6):
            g, m = k >> 1, k & 1
            i0 = len(mf); starts.append(i0)
            pre[i0] = [('wait', dict(lg='w', force=True))]
            if k == 0: pre[i0] = [('wait', dict(lg='w', vm=f'E{ps}', force=True))]
            for tt in range(4): mf += chain(ps, g, m, tt, k & 1)
            j = i0
            if k == 5:
                must[j] = [('wait', dict(vm=f'W{ps+1}', force=True)), "s_barrier"]
                must[j+1] = [[f"s_add_u32 s55, s55, {SLOT}", f"s_cmp_ge_u32 s55, {4*SLOT}", "s_cselect_b32 s55, 0, s55"]]
                must[j+2] = ["v_add_u32 v3, s55, v2"]
                j += 3
            for t_, x in enumerate(rdWb(3, (k+1) % 6, (k+1) & 1)): must.setdefault(j + t_, []).append(x)
        spread(must, ext_ops(ps+1) + dma_ops(ps+2), 8, starts[5] - 8)
        if not ps & 1:
            j = starts[3] + 8
            must.setdefault(j, []).append(["s_cmp_eq_u32 s66, 3", "s_cselect_b32 s63, s18, 0x40000000"])
            must.setdefault(j+1, []).append(('wait', dict(vm='st', force=True)))
            must.setdefault(j+2, []).append(('vm', "buffer_atomic_add v14, v15, s[12:15], s63 offen sc1", 'fl'))
        S.run(mf, pre, must, gelu_ops(ps-1))
        assert S.left == 0
    def body(ps, u):
        do_pass(ps)
        p("s_cmp_eq_u32 s66, 3\ns_cbranch_scc1 LF_p4done")
        p(f"s_cmp_lg_u32 s66, 2\ns_cbranch_scc1 LF_nosw")
        p(f"s_add_u32 s36, s{S_WS}, s64\ns_addc_u32 s37, s{S_WS+1}, 0\ns_mov_b32 s51, s50")
        p.label("LF_nosw")
        do_pass(ps+1)
    p("s_mov_b32 s66, 0")
    p(".p2align 3")
    p.label("LF_loop4")
    i0 = len(p.items); body(2, 0); i1 = len(p.items); body(4, 1); merge_loop(p, i0, i1)
    p("s_add_u32 s66, s66, 1\ns_branch LF_loop4")
    p.label("LF_p4done")
    p("s_nop 4")
    p(f"s_mov_b32 s62, s67\ns_add_u32 s18, s18, {FB2-FB}")
    for x in gelu_ops(8): emit(x)
    ACC5, AR5 = 16, 88
    PKR, XR5, GB, VA, RX = 184, 212, 224, 244, 88
    p("s_and_b32 s31, s2, 3")
    p("s_bfe_u32 s28, s2, 0x10002\ns_lshl_b32 s28, s28, 3\ns_bfe_u32 s29, s2, 0x30003\ns_add_u32 s28, s28, s29")
    p("s_lshr_b32 s29, s2, 6\ns_lshl_b32 s30, s28, 2\ns_add_u32 s30, s30, s3")
    p("s_and_b32 s55, s31, 1\ns_lshl_b32 s55, s55, 12\nv_add_u32 v6, s55, v2\ns_sub_u32 s55, 4096, s55\nv_add_u32 v7, s55, v2")
    p(f"s_mov_b32 s54, {3*SLOT}\nv_add_u32 v3, s54, v6\nv_add_u32 v4, s54, v7\nv_add_u32 v5, s54, v2")
    p("s_lshr_b32 s48, s31, 1\ns_lshl_b32 s48, s48, 10\nv_add_u32 v8, s48, v2\nv_xor_b32 v9, 1024, v8")
    p(f"s_add_u32 s32, s{S_WS}, {hex(AF)}\ns_addc_u32 s33, s{S_WS+1}, 0\ns_add_u32 s34, s31, 1\ns_mul_i32 s34, s34, {36*131072}\ns_mov_b32 s35, 0x20000")
    srd(p, 40, S_WS, S_WS+1, PART, PART_SZ)
    p(f"s_mul_i32 s48, s31, {36*131072}\ns_lshl_b32 s49, s30, 11\ns_add_u32 s48, s48, s49")
    p(f"s_lshr_b32 s17, s30, 1\ns_lshl_b32 s17, s17, 2\ns_add_u32 s17, s17, s31\ns_lshl_b32 s17, s17, 7\ns_add_u32 s17, s17, {FB}")
    mk('', 3)
    p.vm = []; p.lg = []
    p("s_waitcnt vmcnt(4)\ns_barrier\ns_mov_b32 s24, s18")
    srd(p, 44, S_WS, S_WS+1, X2, XT_SZ)
    srd(p, 56, S_WS, S_WS+1, MOD, MOD_SZ)
    srd(p, 64, S_OUT, S_OUT+1, 0, T*D*2)
    p("s_lshl_b32 s8, s28, 2\ns_add_u32 s8, s8, s29")
    def mbox(dst, s_dest, m): p(f"s_lshl_b32 s{dst}, s8, 2\ns_add_u32 s{dst}, s{dst}, s{s_dest}\ns_mul_i32 s{dst}, s{dst}, 3\ns_add_u32 s{dst}, s{dst}, {m-1}\ns_lshl_b32 s{dst}, s{dst}, 2\ns_add_u32 s{dst}, s{dst}, s3\ns_mul_i32 s{dst}, s{dst}, 2560")
    for m in (1, 2, 3):
        p(f"s_xor_b32 s9, s31, {m}"); mbox(59+m, 9, m)
    mbox(16, 31, 1)
    p("s_bitcmp1_b32 s31, 0\ns_cselect_b32 s63, s60, 0x40000000\ns_cselect_b32 s68, s62, s61\ns_cselect_b32 s21, 0x40000000, 0")
    p(f"v_lshlrev_b32 v{VA}, 3, v1\nv_add_u32 v{VA+1}, s21, v{VA}")
    p("s_lshl_b32 s69, s8, 2\ns_add_u32 s69, s69, s3\ns_lshl_b32 s69, s69, 7\ns_mov_b32 s20, 0xffff0000")
    for i in range(72): p(f"v_mov_b32 v{ACC5+i}, 0")
    def rdW5(u):
        t = u % 9
        return [('lds', f"ds_read_b128 {ar(16*(u%3)+4*l,4)}, v{3 if t < 4 else 4 if t < 8 else 5} offset:{(9*l+(t-4 if 4 <= t < 8 else t))*1024}", f'w{u}') for l in range(4)]
    for x in rdW5(0) + rdW5(1): emit(x)
    poll(p, "LF_b", 10, 15, 17, 8)
    signal(p, 24, 14, 15)
    p(f"s_add_u32 s17, s17, {FB2-FB}")
    mk('', 4)
    mk('5', 0)
    def a_ops(n):
        L = []
        for g in range(4*n, 4*n+4):
            r = AR5 + 8*(g % 12)
            L += [('vm', f"buffer_load_dwordx4 {vr(r,4)}, v8, s[32:35], s48 offen sc1", f'A{n}'),
                  ('vm', f"buffer_load_dwordx4 {vr(r+4,4)}, v9, s[32:35], s48 offen sc1", f'A{n}'),
                  "s_add_u32 s48, s48, 131072"]
        return L
    for x in a_ops(0) + a_ops(1): emit(x)
    p.vm = ['W1'] + p.vm if False else p.vm
    p("v_and_b32 v10, 15, v1\nv_lshrrev_b32 v11, 4, v1")
    p("s_mul_i32 s9, s29, 144\ns_and_b32 s10, s31, 1\ns_lshl_b32 s10, s10, 6\ns_add_u32 s10, s10, s9\ns_add_u32 s9, s9, 128")
    p("v_lshl_add_u32 v12, v11, 3, s10\nv_lshl_add_u32 v13, v11, 2, s9")
    p("s_lshr_b32 s8, s31, 1\ns_lshl_b32 s9, s30, 1\ns_add_u32 s8, s8, s9\ns_mul_i32 s9, s8, 18432")
    p(f"v_lshlrev_b32 v{VA+4}, 5, v12\nv_lshl_add_u32 v{VA+4}, v10, 4, v{VA+4}")
    p.vmem(f"buffer_load_dwordx4 {vr(XR5,4)}, v{VA+4}, s[44:47], s9 offen sc1", 'X')
    p.vmem(f"buffer_load_dwordx4 {vr(XR5+4,4)}, v{VA+4}, s[44:47], s9 offen offset:1024 sc1", 'X')
    p(f"v_lshrrev_b32 v{VA+4}, 3, v13\nv_lshlrev_b32 v{VA+4}, 8, v{VA+4}\nv_lshl_add_u32 v{VA+4}, v10, 4, v{VA+4}\nv_and_b32 v{VA+5}, 4, v13\nv_lshl_add_u32 v{VA+4}, v{VA+5}, 1, v{VA+4}")
    p.vmem(f"buffer_load_dwordx2 {vr(XR5+8,2)}, v{VA+4}, s[44:47], s9 offen sc1", 'X')
    p(f"s_mov_b32 s10, {5*2304}\nv_lshlrev_b32 v{VA+4}, 2, v12\nv_lshlrev_b32 v{VA+5}, 2, v13")
    for k in range(4): p.vmem(f"buffer_load_dwordx4 {vr(GB+4*k,4)}, v{VA+4}, s[56:59], s10 offen offset:{128*(k>>1)+16*(k&1)}", 'X')
    p.vmem(f"buffer_load_dwordx4 {vr(GB+16,4)}, v{VA+5}, s[56:59], s10 offen", 'X')
    p("s_lshl_b32 s8, s8, 4\nv_add_u32 v10, s8, v10\nv_mul_u32_u24 v10, 1152, v10\nv_lshl_add_u32 v12, v12, 1, v10\nv_lshl_add_u32 v13, v13, 1, v10\nv_add_u32 v13, s21, v13")
    def body5(it):
        for n in range(3*it, 3*it+3):
            mf, pre, must = [], {}, {}
            for t in range(9):
                u = 9*n + t
                pre[len(mf)] = [('wait', dict(lg=f'w{u}', force=True))] if t else [('wait', dict(lg=f'w{u}', vm=f'A{n}', force=True))]
                j0 = len(mf)
                for tt in range(2):
                    acc = vr(ACC5 + 4*(9*tt+t), 4)
                    for l in range(4): mf.append(mfma16(acc, ar(16*(u%3)+4*l, 4), vr(AR5+8*((4*n+l)%12)+4*tt, 4), acc))
                if t == 7:
                    must[j0] = [('wait', dict(vm=f'W{n+1}', force=True)), "s_barrier"]
                    must[j0+1] = [["s_add_u32 s54, s54, 36864", f"s_cmp_ge_u32 s54, {4*36864}", "s_cselect_b32 s54, 0, s54"]]
                    must[j0+2] = ["v_add_u32 v3, s54, v6"]
                    j0 += 3
                if t == 8: must[j0+5] = ["v_add_u32 v4, s54, v7", "v_add_u32 v5, s54, v2"]
                for k, x in enumerate(rdW5(u+2)): must.setdefault(j0 + k, []).append(x)
            if n % 3 == 1:
                must.setdefault(0, []).append(f"v_mov_b32 v{VA+3}, 0")
                must.setdefault(1, []).append(('vm', f"buffer_atomic_add v{VA+3}, v15, s[12:15], s17 offen sc0 sc1", f'F{n}'))
            if n % 3 == 2:
                p.wait(vm=f'F{n-1}', force=True)
                p(f"v_readfirstlane_b32 s11, v{VA+3}\ns_cmp_lg_u32 s19, 1\ns_cbranch_scc1 LF_b2_ok\ns_cmp_ge_u32 s11, 8\ns_cbranch_scc1 LF_b2_ok")
                poll(p, "LF_b2", VA+3, 15, 17, 8)
                p.label("LF_b2_ok")
            spread(must, dma_ops(n+2) + a_ops(n+2), 2, 70)
            S.run(mf, pre, must, [])
    mk('5', 1)
    p("s_mov_b32 s19, 0")
    p(".p2align 3")
    p.label("LF_loop5")
    i0 = len(p.items); body5(0); i1 = len(p.items); body5(1); merge_loop(p, i0, i1)
    p("s_add_u32 s19, s19, 1\ns_cmp_lt_u32 s19, 3\ns_cbranch_scc1 LF_loop5")
    mk('', 5)
    mk('5', 2)
    src = {1: 4, 2: 9, 3: 13}
    for mi, m in enumerate((1, 2, 3)):
        for k in range(2):
            a = ACC5 + 4*(src[m] + 2*k); r = PKR + 8*mi + 4*k
            for d in range(4): p(f"v_cvt_pk_bf16_f32 v{r+d}, v{a+2*d}, v{a+2*d+1}")
            p(f"buffer_store_dwordx4 {vr(r,4)}, v2, s[40:43], s{59+m} offen offset:{1024*k} sc1")
    for k, (t, sr_) in enumerate(((8, 63), (17, 68))):
        a = ACC5 + 4*t; r = PKR + 24 + 2*k
        for d in range(2): p(f"v_cvt_pk_bf16_f32 v{r+d}, v{a+2*d}, v{a+2*d+1}")
        p(f"buffer_store_dwordx2 {vr(r,2)}, v{VA+0}, s[40:43], s{sr_} offen offset:2048 sc1")
    U = ACC5 + 40
    for i in range(10): p(f"v_lshlrev_b32 v{U+2*i}, 16, v{XR5+i}\nv_and_b32 v{U+2*i+1}, s20, v{XR5+i}")
    mk('5', 3)
    signal(p, 69, 14, 15)
    mk('5', 4)
    poll(p, "LF_c", 10, 15, 69, 4)
    mk('5', 5)
    p.vm = []
    for m in range(3):
        for k in range(2): p.vmem(f"buffer_load_dwordx4 {vr(RX+12*m+4*k,4)}, v2, s[40:43], s16 offen offset:{1024*k} sc1", f'R{m}')
        p.vmem(f"buffer_load_dwordx2 {vr(RX+12*m+8,2)}, v{VA+1}, s[40:43], s16 offen offset:2048 sc1", f'R{m}')
        if m < 2: p("s_add_u32 s16, s16, 10240")
    own = [ACC5+i for i in range(16)] + [ACC5+32+i for i in range(4)]
    TT = RX + 40
    for m in range(3):
        p.wait(vm=f'R{m}')
        for i in range(10): p(f"v_lshlrev_b32 v{TT+2*i}, 16, v{RX+12*m+i}\nv_and_b32 v{TT+2*i+1}, s20, v{RX+12*m+i}")
        for i in range(10): p(f"v_pk_add_f32 {vr(own[2*i],2)}, {vr(own[2*i],2)}, {vr(TT+2*i,2)}")
    for i in range(10): p(f"v_pk_fma_f32 {vr(U+2*i,2)}, {vr(own[2*i],2)}, {vr(GB+2*i,2)}, {vr(U+2*i,2)}")
    for i in range(10): p(f"v_cvt_pk_bf16_f32 v{XR5+i}, v{U+2*i}, v{U+2*i+1}")
    p(f"buffer_store_dwordx4 {vr(XR5,4)}, v12, s[64:67], 0 offen")
    p(f"buffer_store_dwordx4 {vr(XR5+4,4)}, v12, s[64:67], 0 offen offset:64")
    p(f"buffer_store_dwordx2 {vr(XR5+8,2)}, v13, s[64:67], 0 offen")
    p.label("LF_exit")
    p("s_endpgm")
    return p.finalize(), dict(name="kf_kernel", grid=256, block=256, lds=4*SLOT+1024, vgpr=256, agpr=236)
```

```python
import sys, os
from asmlib import *
import k0, k1, k2, kf
PROF = 0x8000000
def instrument(body, idx):
    head = "".join(f"    s_mov_b32 s{70+2*i}, 0\n" for i in range(6)) + "    s_memrealtime s[88:89]\n    s_memtime s[90:91]\n    v_readfirstlane_b32 s85, v0\n"
    tail = f"""    s_waitcnt vmcnt(0) lgkmcnt(0)
    s_memrealtime s[92:93]
    s_memtime s[94:95]
    s_load_dwordx2 s[86:87], s[0:1], 88
    s_getreg_b32 s84, hwreg(HW_REG_XCC_ID)
    s_waitcnt lgkmcnt(0)
    s_lshr_b32 s85, s85, 6
    s_lshl_b32 s83, s2, 4
    s_add_u32 s83, s83, s85
    s_lshl_b32 s83, s83, 6
    s_add_u32 s83, s83, {PROF + idx*0x100000}
    s_mov_b64 exec, 1
    v_mov_b32 v0, s88
    v_mov_b32 v1, s90
    v_mov_b32 v2, s92
    v_mov_b32 v3, s94
    v_mov_b32 v4, s83
    v_mov_b32 v6, s84
    v_mov_b32 v7, s70
    v_mov_b32 v8, s72
    v_mov_b32 v9, s74
    v_mov_b32 v10, s76
    v_mov_b32 v11, s78
    v_mov_b32 v12, s80
    v_mov_b32 v13, s96
    global_store_dwordx4 v4, v[0:3], s[86:87]
    global_store_dwordx4 v4, v[6:9], s[86:87] offset:16
    global_store_dwordx4 v4, v[10:13], s[86:87] offset:32
    s_endpgm"""
    return head + body.replace("    s_endpgm", tail)
def instrument_dbg(body, idx):
    head = "    s_memrealtime s[88:89]\n    v_readfirstlane_b32 s85, v0\n"
    tail = f"""    s_waitcnt vmcnt(0) lgkmcnt(0)
    s_cmp_ge_u32 s2, 16
    s_cbranch_scc1 0f
    s_cmp_lg_u32 s85, 0
    s_cbranch_scc1 0f
    s_memrealtime s[92:93]
    s_load_dwordx2 s[86:87], s[0:1], 80
    s_waitcnt lgkmcnt(0)
    s_add_u32 s86, s86, {512*(3-idx)}
    s_addc_u32 s87, s87, 0
    s_mov_b64 exec, 1
    s_not_b32 s88, s88
    v_mov_b32 v0, s88
    v_mov_b32 v1, s92
    v_mov_b32 v4, {8*idx}
    global_atomic_umax v4, v0, s[86:87]
    global_atomic_umax v4, v1, s[86:87] offset:4
0:
    s_endpgm"""
    return head + body.replace("    s_endpgm", tail)
def build(gens, prof=False):
    hdr = open('adaLN_cond__softmax_full_mha__glu_gated_geglu__prompt.s.ref').read().split('; Override launch')[0]
    ks = [g() for g in gens]
    out = hdr
    for body, m in ks: out += f"; @launch kernel={m['name']} grid=({m['grid']},1,1) block=({m['block']},1,1) lds={m['lds']}\n"
    out += '.amdgcn_target "amdgcn-amd-amdhsa--gfx950"\n'
    descs = ''
    for i, (body, m) in enumerate(ks):
        sm = os.environ.get('STMOD', '')
        if sm:
            body = "\n".join(l + " " + sm if l.strip().startswith("buffer_store") else l for l in body.split("\n"))
        if prof == 'dbg': body = instrument_dbg(body, i)
        elif prof: body = instrument(body, i)
        h, d = kernel_text(m['name'], body, m['vgpr'], m['agpr'])
        out += h; descs += d
    return out + descs
if __name__ == '__main__':
    G = [k0.gen_k0, k1.gen_k1, k2.gen_k2, kf.gen_kf]
    PROFILE[0] = True
    open(os.environ.get('PROF', 'prof.s'), 'w').write(build(G, True))
    PROFILE[0] = False
    open('dbg.s', 'w').write(build(G, 'dbg'))
    txt = build(G)
    dst = sys.argv[1] if len(sys.argv) > 1 else 'adaLN_cond__softmax_full_mha__glu_gated_geglu__prompt.s'
    open(dst, 'w').write(txt)
    print("written", dst, len(txt))
```
